```python
import torch

def _softmax(x, axis=-1):
    return torch.softmax(x, dim=axis)
def _gelu(x):
    return torch.nn.functional.gelu(x, approximate="tanh")
def _silu(x):
    return torch.nn.functional.silu(x)
def _sigmoid(x):
    return torch.sigmoid(x)
def _layernorm(x, axis=-1, eps=1e-5):
    m = x.mean(dim=axis, keepdim=True)
    v = x.var(dim=axis, keepdim=True, unbiased=False)
    return (x - m) / torch.sqrt(v + eps)
def _scatter_add(tgt, idx, src, axis=0):
    return tgt.clone().index_add_(axis, idx, src)
def _segment_sum(src, seg, n):
    out = torch.zeros((n,) + src.shape[1:], dtype=src.dtype)
    return out.index_add_(0, seg, src)
def _pad(x, pw):
    flat = tuple(v for pair in reversed(pw) for v in pair)
    return torch.nn.functional.pad(x, flat)

kernel_name = 'gated_mix__grouped_kv_mqa__spectral_fnet__prompt'

def setup_inputs():

    _w = (lambda a: (lambda t: t.to(torch.bfloat16) if t.is_floating_point() else t)(torch.as_tensor(a)))
    def _A_setup():
        B, S, D, H = 1, 2048, 640, 32
        Dh = D // H
        return {
            "x": _w((lambda *s: torch.randn(*s, dtype=torch.bfloat16) * 0.05)(B, S, D)),
            "wq": _w((lambda *s: torch.randn(*s, dtype=torch.bfloat16) * 1.6)(D, H * Dh)),
            "wk": _w((lambda *s: torch.randn(*s, dtype=torch.bfloat16) * 1.6)(D, Dh)),
            "wv": _w((lambda *s: torch.randn(*s, dtype=torch.bfloat16) * 1.6)(D, Dh)),
            "wo": _w((lambda *s: torch.randn(*s, dtype=torch.bfloat16) * 1.6)(H * Dh, D)),
        }
    _A_in = _A_setup()

    def _B_setup():
        B, S, D = 1, 2048, 640
        ns = torch.arange(S)[:, None] * torch.arange(S)[None, :]
        nd = torch.arange(D)[:, None] * torch.arange(D)[None, :]
        Ws_re = torch.cos(-2.0 * torch.pi * ns / S).to(float)
        Ws_im = torch.sin(-2.0 * torch.pi * ns / S).to(float)
        Wd_re = torch.cos(-2.0 * torch.pi * nd / D).to(float)
        Wd_im = torch.sin(-2.0 * torch.pi * nd / D).to(float)
        return {
            "x": _w((lambda *s: torch.randn(*s, dtype=torch.bfloat16) * 0.05)(B, S, D)),
            "dft_seq_re": _w(Ws_re),
            "dft_seq_im": _w(Ws_im),
            "dft_hid_re": _w(Wd_re),
            "dft_hid_im": _w(Wd_im),
        }
    _B_in = _B_setup()

    return {
        "A_x": _A_in["x"],
        "A_wq": _A_in["wq"],
        "A_wk": _A_in["wk"],
        "A_wv": _A_in["wv"],
        "A_wo": _A_in["wo"],
        "B_x": _B_in["x"],
        "B_dft_seq_re": _B_in["dft_seq_re"],
        "B_dft_seq_im": _B_in["dft_seq_im"],
        "B_dft_hid_re": _B_in["dft_hid_re"],
        "B_dft_hid_im": _B_in["dft_hid_im"],
        "gate_w": _w((lambda *s: torch.randn(*s, dtype=torch.bfloat16) * 0.05)(640) * 16.0),
    }

def reference(A_x, A_wq, A_wk, A_wv, A_wo, B_x, B_dft_seq_re, B_dft_seq_im, B_dft_hid_re, B_dft_hid_im, gate_w):
    def _A_ref(x, wq, wk, wv, wo):
        B, S, D = x.shape
        H = 32
        Dh = D // H
        q = (lambda x, *d: x.permute(*d))((x @ wq).reshape(B, S, H, Dh), 0, 2, 1, 3)
        k = x @ wk
        v = x @ wv
        scores = torch.einsum("bhqd,bkd->bhqk", q, k) * (Dh ** -0.5)
        p = _softmax(scores, axis=-1)
        o = torch.einsum("bhqk,bkd->bhqd", p, v)
        return (lambda x, *d: x.permute(*d))(o, 0, 2, 1, 3).reshape(B, S, H * Dh) @ wo

    def _B_ref(x, dft_seq_re, dft_seq_im, dft_hid_re, dft_hid_im):
        a = torch.einsum("bsd,ed->bse", x, dft_hid_re)
        b = torch.einsum("bsd,ed->bse", x, dft_hid_im)
        y = torch.einsum("ts,bse->bte", dft_seq_re, a) - torch.einsum("ts,bse->bte", dft_seq_im, b)
        return y

    x = A_x
    g = _sigmoid((x * gate_w).sum(-1, keepdims=True))
    a = _A_ref(x, A_wq, A_wk, A_wv, A_wo)
    b = _B_ref(x, B_dft_seq_re, B_dft_seq_im, B_dft_hid_re, B_dft_hid_im)
    return g * a + (1 - g) * b
```

```python
import re

TRANS = ('v_exp_f32', 'v_log_f32', 'v_rcp_f32', 'v_rsq_f32', 'v_sqrt_f32', 'v_sin_f32', 'v_cos_f32',
         'v_exp_f16', 'v_rcp_iflag_f32')


def _regs(tok):
    tok = tok.strip()
    neg = tok.startswith('-')
    if neg:
        tok = tok[1:]
    m = re.match(r'^abs\((.*)\)$', tok)
    if m:
        tok = m.group(1)
    m = re.match(r'^\|(.*)\|$', tok)
    if m:
        tok = m.group(1)
    m = re.match(r'^([vsa])(\d+)$', tok)
    if m:
        return {(m.group(1), int(m.group(2)))}
    m = re.match(r'^([vsa])\[(\d+):(\d+)\]$', tok)
    if m:
        return {(m.group(1), i) for i in range(int(m.group(2)), int(m.group(3)) + 1)}
    if tok in ('vcc', 'vcc_lo', 'vcc_hi'):
        return {('x', 'vcc')}
    if tok in ('exec', 'exec_lo', 'exec_hi'):
        return {('x', 'exec')}
    if tok == 'm0':
        return {('x', 'm0')}
    if tok == 'scc':
        return {('x', 'scc')}
    return set()


def split_ops(s):
    out, depth, cur = [], 0, ''
    for ch in s:
        if ch in '[(':
            depth += 1
        if ch in '])':
            depth -= 1
        if ch == ',' and depth == 0:
            out.append(cur.strip())
            cur = ''
        else:
            cur += ch
    if cur.strip():
        out.append(cur.strip())
    return out


class Ins:
    __slots__ = ('text', 'mn', 'ops', 'mods', 'dst', 'src', 'kind', 'passes', 'srcc', 'srcab', 'ws', 'data')

    def __init__(self, text):
        self.text = text
        t = text.split(';')[0].strip()
        parts = t.split(None, 1)
        self.mn = mn = parts[0]
        rest = parts[1] if len(parts) > 1 else ''
        ops = split_ops(rest)
        mods = []
        if ops:
            last = ops[-1].split()
            ops[-1] = last[0] if last else ''
            mods = last[1:]
        self.ops, self.mods = ops, mods
        self.dst, self.src = set(), set()
        self.passes = 0
        self.srcc, self.srcab = set(), set()
        self.data = set()
        self.ws = 1
        R = [_regs(o) for o in ops]
        U = lambda l: set().union(*l) if l else set()
        if mn.startswith('v_mfma'):
            self.kind = 'mfma'
            self.dst = R[0]
            self.srcab = R[1] | R[2]
            self.srcc = R[3]
            self.src = self.srcab | self.srcc
            self.passes = 8 if '32x32x16' in mn else 4 if '16x16x32' in mn else None
            assert self.passes
        elif mn.startswith('v_cmp'):
            self.kind = 'valu'
            self.dst = R[0]
            self.src = U(R[1:])
        elif mn.startswith('v_permlane') and 'swap' in mn:
            self.kind = 'valu'
            self.dst = R[0] | R[1]
            self.src = R[0] | R[1]
        elif mn.startswith('v_'):
            self.kind = 'valu'
            self.dst = R[0]
            self.src = U(R[1:])
            if mn.startswith(('v_add_co', 'v_sub_co', 'v_addc_co', 'v_subb_co')):
                self.dst = R[0] | R[1]
                self.src = U(R[2:])
            if mn.startswith(('v_fmac', 'v_mac')) or 'UNUSED_PRESERVE' in text:
                self.src |= R[0]
            if mn.startswith('v_cndmask') and len(ops) == 3:
                self.src |= {('x', 'vcc')}
        elif mn.startswith('ds_read') or mn.startswith('ds_bpermute') or mn.startswith('ds_swizzle'):
            self.kind = 'ds'
            self.dst = R[0]
            self.src = U(R[1:])
        elif mn.startswith('ds_'):
            self.kind = 'ds'
            self.src = U(R)
            self.data = U(R[1:])
        elif mn.startswith('buffer_load') or mn.startswith('global_load'):
            self.kind = 'vmem'
            if 'lds' in mods or '_lds_' in mn:
                self.src = U(R) | {('x', 'm0')}
            else:
                self.dst = R[0]
                self.src = U(R[1:])
        elif mn.startswith('buffer_store'):
            self.kind = 'vmem'
            self.src = U(R)
            self.data = R[0]
        elif mn.startswith('global_store'):
            self.kind = 'vmem'
            self.src = U(R)
            self.data = R[1]
        elif mn.startswith('buffer_') or mn.startswith('global_'):
            self.kind = 'vmem'
            self.src = U(R)
        elif mn.startswith('s_load') or mn.startswith('s_buffer_load') or mn.startswith('s_memtime') or mn.startswith('s_memrealtime'):
            self.kind = 'smem'
            self.dst = R[0]
            self.src = U(R[1:])
        elif mn == 's_nop':
            self.kind = 'nop'
            self.ws = int(ops[0], 0) + 1
        elif mn in ('s_waitcnt', 's_barrier', 's_endpgm', 's_setprio', 's_branch', 's_sleep') or mn.startswith('s_cbranch'):
            self.kind = 'ctl'
            if mn.startswith('s_cbranch_vcc'):
                self.src = {('x', 'vcc')}
            if mn.startswith('s_cbranch_exec'):
                self.src = {('x', 'exec')}
        elif mn.startswith('s_cmp') or mn.startswith('s_bitcmp'):
            self.kind = 'salu'
            self.src = U(R)
        elif mn.startswith('s_'):
            self.kind = 'salu'
            self.dst = R[0]
            self.src = U(R[1:])
            if 'saveexec' in mn:
                self.dst |= {('x', 'exec')}
                self.src |= {('x', 'exec')}
        else:
            raise ValueError('unknown instruction: ' + text)


def check_trace(name, texts, verbose=True):
    probs = []
    ins = [Ins(t) for t in texts if t.strip() and not t.strip().startswith(';') and not t.strip().endswith(':')]
    pos = []
    p = 0
    for i in ins:
        pos.append(p)
        p += i.ws
    last_w = {}
    last_mfma_c = {}
    last_store = {}
    vm_q = []
    lg_q = []

    def dist(a, b):
        return pos[b] - pos[a] - ins[a].ws

    def need(a, b, n, why):
        if dist(a, b) < n:
            probs.append(f"[{name}] {why}: need {n} have {dist(a, b)}\n    P: {ins[a].text.strip()}\n    C: {ins[b].text.strip()}")

    for b, I in enumerate(ins):
        if I.mn == 's_waitcnt':
            t = I.text.split(';')[0]
            m = re.search(r'vmcnt\((\d+)\)', t)
            if m:
                n = int(m.group(1))
                while len(vm_q) > n:
                    vm_q.pop(0)
            m = re.search(r'lgkmcnt\((\d+)\)', t)
            if m:
                n = int(m.group(1))
                if n > 0 and any(k == 'smem' for _, _, k in lg_q):
                    probs.append(f"[{name}] counted lgkmcnt with smem outstanding: {I.text.strip()}")
                while len(lg_q) > n:
                    lg_q.pop(0)
            continue
        touched = I.src | I.dst
        for q in (vm_q, lg_q):
            for e in q:
                if e[1] & touched:
                    probs.append(f"[{name}] missing waitcnt\n    LOAD: {ins[e[0]].text.strip()}\n    USE:  {I.text.strip()}")
        for r in I.src:
            a = last_w.get(r)
            if a is None:
                continue
            A = ins[a]
            if A.kind == 'valu':
                if I.kind == 'mfma' and r[0] == 'v':
                    need(a, b, 2, 'VALU->MFMA operand')
                if A.mn.startswith(TRANS) and I.kind == 'valu' and not I.mn.startswith(TRANS):
                    need(a, b, 1, 'trans->VALU')
                if A.mn.startswith(TRANS) and I.kind in ('vmem', 'ds', 'mfma'):
                    need(a, b, 1, 'trans->mem/mfma')
                if r[0] == 's' or r == ('x', 'vcc'):
                    if I.kind == 'vmem':
                        need(a, b, 5, 'VALU sgpr->VMEM')
                    if I.kind == 'valu':
                        if I.mn.startswith(('v_readlane', 'v_writelane')):
                            need(a, b, 4, 'VALU sgpr->lane select')
                        else:
                            need(a, b, 2, 'VALU sgpr/vcc->VALU const')
                    if I.kind in ('salu', 'ctl', 'smem'):
                        need(a, b, 1, 'VALU sgpr->SALU (paranoia)')
                if r[0] == 'v':
                    if I.mn.startswith(('v_readfirstlane', 'v_readlane')):
                        need(a, b, 1, 'VALU->readlane')
                    if I.mn.startswith('v_permlane'):
                        need(a, b, 2, 'VALU->permlane')
                    if 'dpp' in I.text or 'row_' in I.text or 'quad_perm' in I.text:
                        need(a, b, 2, 'VALU->DPP')
                    if ('sdwa' in A.mn or 'op_sel' in A.text) and I.kind == 'valu':
                        need(a, b, 1, 'sdwa/opsel->VALU')
            if A.kind == 'mfma':
                tbl = {4: 8, 8: 12}[A.passes]
                if I.kind == 'mfma':
                    if r in I.srcab:
                        need(a, b, tbl, 'MFMA D->MFMA A/B')
                    if r in I.srcc:
                        if not (I.srcc == A.dst and I.passes == A.passes):
                            need(a, b, {4: 6, 8: 10}[A.passes], 'MFMA D->MFMA C overlap')
                else:
                    need(a, b, tbl, 'MFMA D->read')
            if A.kind == 'salu' and r == ('x', 'm0') and I.kind == 'vmem':
                need(a, b, 1, 'm0->LDS DMA')
        for r in I.dst:
            a = last_w.get(r)
            if a is not None and ins[a].kind == 'mfma' and I.kind != 'mfma':
                need(a, b, {4: 8, 8: 12}[ins[a].passes], 'MFMA D->WAW')
            if a is not None and ins[a].kind == 'mfma' and I.kind == 'mfma' and not (I.srcc == ins[a].dst):
                need(a, b, {4: 6, 8: 10}[ins[a].passes], 'MFMA D->MFMA D WAW')
            a = last_mfma_c.get(r)
            if a is not None and I.kind == 'valu':
                need(a, b, {4: 3, 8: 7}[ins[a].passes], 'MFMA srcC WAR')
            a = last_store.get(r)
            if a is not None:
                need(a, b, 2 if I.kind == 'valu' else 1, 'store data WAR')
        for r in I.dst:
            last_w[r] = b
        if I.kind == 'mfma':
            for r in I.srcc:
                last_mfma_c[r] = b
        if I.kind == 'vmem' and I.data and ('x4' in I.mn or 'x3' in I.mn):
            for r in I.data:
                last_store[r] = b
        if I.kind == 'vmem':
            vm_q.append((b, set(I.dst)))
            if len(vm_q) > 63:
                probs.append(f"[{name}] more than 63 vmem outstanding at {I.text.strip()}")
        if I.kind == 'ds':
            lg_q.append((b, set(I.dst), 'ds'))
            if len(lg_q) > 15:
                probs.append(f"[{name}] more than 15 lgkm outstanding at {I.text.strip()}")
        if I.kind == 'smem':
            lg_q.append((b, set(I.dst), 'smem'))
    return probs


class Block:
    def __init__(self):
        self.l = []

    def __call__(self, s):
        for line in s.split('\n'):
            if line.strip():
                self.l.append('    ' + line.strip() if not line.strip().endswith(':') else line.strip())
        return self

    def label(self, name):
        self.l.append(name + ':')

    def extend(self, other):
        self.l.extend(other.l)
        return self

    def text(self):
        return '\n'.join(self.l) + '\n'


def vr(a, n):
    return f"v[{a}:{a + n - 1}]" if n > 1 else f"v{a}"


def sr(a, n):
    return f"s[{a}:{a + n - 1}]" if n > 1 else f"s{a}"


def kernel_text(name, body, nvgpr, nsgpr=100):
    acc = (nvgpr + 3) // 4 * 4
    return f""".text
.globl {name}
.p2align 8
.type {name},@function
{name}:
{body}
.section .rodata,"a"
.p2align 6
.amdhsa_kernel {name}
  .amdhsa_next_free_vgpr {nvgpr}
  .amdhsa_next_free_sgpr {nsgpr}
  .amdhsa_accum_offset {acc}
  .amdhsa_group_segment_fixed_size 0
  .amdhsa_kernarg_size 112
  .amdhsa_user_sgpr_count 2
  .amdhsa_user_sgpr_kernarg_segment_ptr 1
  .amdhsa_system_sgpr_workgroup_id_x 1
.end_amdhsa_kernel
"""


WS_PROF = 0x7C0000
PROF = {'on': False}
S_STAMP = 76


def stamp(b, i, rt=False):
    if not PROF['on']:
        return
    if rt:
        b(f"s_memrealtime s[{S_STAMP+2*i}:{S_STAMP+2*i+1}]")
    else:
        b(f"s_memtime s[{S_STAMP+2*i}:{S_STAMP+2*i+1}]")
    b("s_waitcnt lgkmcnt(0)")


def stamp_store(b, kidx, s_ws, s_wid, v0, n=8):
    if not PROF['on']:
        return
    b("s_mov_b64 exec, 1")
    b(f"s_getreg_b32 s{S_STAMP+14}, hwreg(HW_REG_XCC_ID)")
    b(f"s_lshl_b32 s3, s2, 3")
    b(f"s_add_u32 s3, s3, s{s_wid}")
    b(f"s_lshl_b32 s3, s3, 5")
    b(f"s_add_u32 s3, s3, {WS_PROF + kidx*65536}")
    b(f"v_mov_b32 v{v0+4}, s3")
    for half in range(2):
        for j in range(4):
            b(f"v_mov_b32 v{v0+j}, s{S_STAMP+2*(4*half+j)}")
        b("s_nop 4")
        b(f"buffer_store_dwordx4 v[{v0}:{v0+3}], v{v0+4}, s[{s_ws}:{s_ws+3}], 0 offen offset:{16*half}")
        b("s_nop 1")
    b("s_mov_b64 exec, -1")
```

```python
import sys, importlib
sys.path.insert(0, 'gen')
HEADER = open('gated_mix__grouped_kv_mqa__spectral_fnet__prompt.s.ref').read().split('; Override launch')[0]

def main(out_path, phases=('p1', 'p2', 'p3'), **opts):
    texts, launches, probs = [], [], []
    for ph in phases:
        mod = importlib.import_module(ph)
        t, p, (g, blk, lds) = mod.build(**opts.get(ph, {}))
        texts.append(t); probs += p
        launches.append(f"; @launch kernel={ph}_kernel grid=({g},1,1) block=({blk},1,1) lds={lds}")
    if probs:
        print("\n".join(probs[:60])); print(len(probs), "PROBLEMS")
    s = HEADER + "\n".join(launches) + '\n.amdgcn_target "amdgcn-amd-amdhsa--gfx950"\n' + "\n".join(texts)
    open(out_path, 'w').write(s)
    return len(probs)

if __name__ == '__main__':
    if '--prof' in sys.argv:
        sys.argv.remove('--prof')
        import asmfw
        asmfw.PROF['on'] = True
    phases = tuple(sys.argv[2].split(',')) if len(sys.argv) > 2 else ('p1', 'p2', 'p3')
    n = main(sys.argv[1], phases)
    sys.exit(1 if n else 0)
```

```python
from asmfw import *
from layout import *
from fsync import *
import struct


def f32bits(x):
    return struct.unpack('<I', struct.pack('<f', x))[0]


QSCALE = 1.4426950408889634 / (20 ** 0.5)

S_X, S_W, S_WS, S_WK, S_WV, S_GT = 24, 28, S_GWS, 36, 40, 44
S_WID, S_MT, S_CT, S_T0, S_T1, S_T2, S_T3 = 48, 49, 50, 51, 52, 53, 54
S_SOFFX, S_SOFFW, S_SGN, S_M0B = 55, 56, 57, 58
S_F = 59

NSTAGE = 10
NTX = " nt" if 'ntx' in FX else ""
NTW = " nt" if 'ntw' in FX else ""
SLOT = 32768


def srd(b, s, lo, hi, size):
    b(f"s_mov_b32 s{s}, s{lo}")
    b(f"s_and_b32 s{s+1}, s{hi}, 0xffff")
    b(f"s_mov_b32 s{s+2}, {size}")
    b(f"s_mov_b32 s{s+3}, 0x00020000")


def prologue():
    b = Block()
    b("s_cmp_ge_u32 s2, 256")
    b("s_cbranch_scc1 f_end")
    stamp(b, 0)
    stamp(b, 1, True)
    b("s_load_dwordx8 s[8:15], s[0:1], 0")
    b("s_load_dwordx4 s[16:19], s[0:1], 64")
    b("s_load_dwordx2 s[20:21], s[0:1], 80")
    b("s_load_dwordx4 s[32:35], s[0:1], 96")
    b("s_load_dwordx2 s[22:23], s[0:1], 32")
    b("s_load_dwordx4 s[72:75], s[0:1], 48")
    b("v_lshrrev_b32 v1, 6, v0")
    b("v_and_b32 v0, 63, v0")
    b("s_and_b32 s3, s2, 7")
    b("s_lshr_b32 s4, s2, 3")
    b(f"v_readfirstlane_b32 s{S_WID}, v1")
    b("s_lshr_b32 s5, s3, 1")
    b("s_lshl_b32 s5, s5, 2")
    b("s_and_b32 s6, s4, 3")
    b(f"s_add_u32 s{S_MT}, s5, s6")
    b("s_and_b32 s5, s3, 1")
    b("s_lshl_b32 s5, s5, 3")
    b("s_lshr_b32 s6, s4, 2")
    b(f"s_add_u32 s{S_CT}, s5, s6")
    b(f"s_mov_b32 s{S_GW}, s{S_WID}")
    b(f"s_lshr_b32 s{S_GMAT}, s3, 2")
    b("s_and_b32 s5, s3, 3")
    b("s_lshl_b32 s5, s5, 3")
    b(f"s_add_u32 s{S_GTT}, s5, s6")
    b(f"s_and_b32 s{S_GET}, s4, 3")
    b("s_waitcnt lgkmcnt(0)")
    srd(b, S_X, 8, 9, 2048 * 1280)
    srd(b, S_WS, 34, 35, WS_USED)
    srd(b, S_DBG, 32, 33, 256)
    b(f"s_cmp_eq_u32 s{S_GMAT}, 0")
    b("s_cselect_b32 s4, s72, s74")
    b("s_cselect_b32 s5, s73, s75")
    srd(b, S_GC, 4, 5, 2048 * 4096)
    srd(b, S_WK, 12, 13, 640 * 40)
    srd(b, S_WV, 14, 15, 640 * 40)
    srd(b, S_GT, 20, 21, 1280)
    srd(b, 20, 22, 23, 640 * 1280)
    b(f"s_cmp_lt_u32 s{S_CT}, 10")
    b("s_cselect_b32 s4, s16, s18")
    b("s_cselect_b32 s5, s17, s19")
    b(f"s_cmp_lt_u32 s{S_CT}, 5")
    b("s_cselect_b32 s4, s10, s4")
    b("s_cselect_b32 s5, s11, s5")
    srd(b, S_W, 4, 5, 640 * 1280)
    b("v_lshrrev_b32 v2, 3, v0")
    b("v_and_b32 v3, 7, v0")
    b("v_lshrrev_b32 v4, 4, v0")
    b("v_and_b32 v5, 31, v0")
    b("v_lshrrev_b32 v6, 5, v0")
    init_zero(b, 28)
    return b


def cpref(b):
    if 'nocp' in FX:
        return 0
    b(f"s_lshl_b32 s3, s{S_GTT}, 2")
    b(f"s_add_u32 s3, s3, s{S_GET}")
    b(f"s_lshl_b32 s3, s3, 3")
    b(f"s_add_u32 s3, s3, s{S_GW}")
    b(f"s_lshl_b32 s3, s3, 13")
    b(f"v_lshlrev_b32 v{V_TMP}, 7, v0")
    b(f"buffer_load_dword v131, v{V_TMP}, s[{S_GC}:{S_GC+3}], s3 offen")
    if 'cp2' in FX:
        b(f"buffer_load_dword v132, v{V_TMP}, s[{S_GC}:{S_GC+3}], s3 offen offset:64")
        return 2
    return 1


CP_STAGE = int(os.environ.get("CPS", "6"))


def touch_x(b):
    if 'tp' not in FX:
        return 0
    b(f"s_and_b32 s{S_T0}, s{S_CT}, 7")
    b(f"s_lshl_b32 s{S_T0}, s{S_T0}, 3")
    b(f"s_add_u32 s{S_T0}, s{S_T0}, s{S_WID}")
    b(f"s_lshl_b32 s{S_T1}, s{S_MT}, 6")
    b(f"s_add_u32 s{S_T0}, s{S_T0}, s{S_T1}")
    b(f"s_mul_i32 s{S_T0}, s{S_T0}, 2560")
    b(f"v_lshlrev_b32 v{V_TMP}, 7, v0")
    b("s_mov_b64 exec, 0xfffff")
    b(f"buffer_load_dword v133, v{V_TMP}, s[{S_X}:{S_X+3}], s{S_T0} offen")
    b("s_mov_b64 exec, -1")
    return 1


V_DX = 8
V_DW = 10
V_AX = 12
V_AW = 20
V_TMP = 28
V_FR = 32
V_ACC = 80
V_EP = 112
NV = 128
V_RDY = 130


def x_dma_offsets(b, rowbase_sgpr_expr_emit, dst, tag):
    for j in range(2):
        b(f"v_add_u32 v{V_TMP}, {4*j}, v4")
        b(f"v_and_b32 v{V_TMP}, 7, v{V_TMP}")
        b(f"v_xor_b32 v{V_TMP}, v{V_TMP}, v3")
        b(f"v_lshlrev_b32 v{V_TMP}, 4, v{V_TMP}")
        b(f"v_add_u32 v{V_TMP+1}, s{S_T0}, v2")
        if j:
            b(f"v_add_u32 v{V_TMP+1}, 8, v{V_TMP+1}")
        b(f"v_mul_u32_u24 v{V_TMP+1}, 1280, v{V_TMP+1}")
        b(f"v_add_u32 v{dst+j}, v{V_TMP}, v{V_TMP+1}")


def n_frag_addrs(b, dst, base_sgpr, hi_delta):
    b(f"v_bfe_u32 v{V_TMP}, v0, 1, 3")
    b(f"v_lshlrev_b32 v{V_TMP+1}, 7, v5")
    b(f"v_add_u32 v{V_TMP+1}, s{base_sgpr}, v{V_TMP+1}")
    for t in range(4):
        b(f"v_add_u32 v{V_TMP+2}, {2*t}, v6")
        b(f"v_xor_b32 v{V_TMP+2}, v{V_TMP+2}, v{V_TMP}")
        b(f"v_lshl_add_u32 v{dst+t}, v{V_TMP+2}, 4, v{V_TMP+1}")
        if hi_delta:
            b(f"v_add_u32 v{dst+4+t}, {hi_delta}, v{dst+t}")


def gemm_path(kind):
    b = Block()
    T = kind == 'Q'
    b(f"s_lshl_b32 s{S_T0}, s{S_MT}, 7")
    b(f"s_lshl_b32 s{S_T1}, s{S_WID}, 4")
    b(f"s_add_u32 s{S_T0}, s{S_T0}, s{S_T1}")
    x_dma_offsets(b, None, V_DX, 'x')
    if not T:
        b(f"s_sub_u32 s{S_F}, s{S_CT}, 5")
        b(f"s_sub_u32 s{S_T2}, s{S_F}, 5")
        b(f"s_cmp_lt_u32 s{S_F}, 5")
        b(f"s_cselect_b32 s{S_T2}, s{S_F}, s{S_T2}")
        b(f"s_cselect_b32 s{S_SGN}, 0, 0x80008000")
        b(f"s_lshl_b32 s{S_T0}, s{S_T2}, 7")
        b(f"s_add_u32 s{S_T0}, s{S_T0}, s{S_T1}")
        x_dma_offsets(b, None, V_DW, 'w')
    else:
        b(f"s_lshl_b32 s{S_T0}, s{S_WID}, 3")
        b(f"v_add_u32 v{V_TMP}, s{S_T0}, v4")
        b(f"v_mul_u32_u24 v{V_TMP}, 1280, v{V_TMP}")
        b(f"v_and_b32 v{V_TMP+1}, 15, v0")
        b(f"v_lshlrev_b32 v{V_TMP+2}, 2, v4")
        b(f"v_xor_b32 v{V_TMP+1}, v{V_TMP+1}, v{V_TMP+2}")
        b(f"v_lshl_add_u32 v{V_TMP}, v{V_TMP+1}, 4, v{V_TMP}")
        b(f"s_lshl_b32 s{S_T0}, s{S_CT}, 8")
        b(f"v_add_u32 v{V_DW}, s{S_T0}, v{V_TMP}")
    b(f"s_lshl_b32 s{S_M0B}, s{S_WID}, 11")

    def dma(stage):
        slot = (stage % 4) * SLOT
        for j in range(2):
            b(f"s_add_u32 m0, s{S_M0B}, {slot + j*1024}")
            b(f"s_mov_b32 s{S_SOFFX}, {stage*128}")
            b(f"buffer_load_dwordx4 v{V_DX+j}, s[{S_X}:{S_X+3}], s{S_SOFFX} offen{NTX} lds")
        for j in range(2):
            b(f"s_add_u32 m0, s{S_M0B}, {slot + 16384 + j*1024}")
            if T:
                b(f"s_mov_b32 s{S_SOFFW}, {stage*64*1280 + j*4*1280}")
                b(f"buffer_load_dwordx4 v{V_DW}, s[{S_W}:{S_W+3}], s{S_SOFFW} offen{NTW} lds")
            else:
                b(f"s_mov_b32 s{S_SOFFW}, {stage*128}")
                b(f"buffer_load_dwordx4 v{V_DW+j}, s[{S_W}:{S_W+3}], s{S_SOFFW} offen{NTW} lds")

    for s in range(3):
        dma(s)
    ntp = touch_x(b)
    if ntp:
        b(f"s_and_b32 s{S_T0}, s{S_MT}, 3")
        if T:
            b(f"s_mul_i32 s{S_T0}, s{S_T0}, 160")
            b(f"s_mul_i32 s{S_T1}, s{S_WID}, 20")
            b(f"s_add_u32 s{S_T0}, s{S_T0}, s{S_T1}")
            b(f"s_mul_i32 s{S_T0}, s{S_T0}, 1280")
            b(f"s_lshl_b32 s{S_T1}, s{S_CT}, 8")
            b(f"s_add_u32 s{S_T0}, s{S_T0}, s{S_T1}")
            b(f"v_lshrrev_b32 v{V_TMP}, 1, v0")
            b(f"v_mul_u32_u24 v{V_TMP}, {1280 - 256}, v{V_TMP}")
            b(f"v_lshl_add_u32 v{V_TMP}, v0, 7, v{V_TMP}")
        else:
            b(f"s_lshl_b32 s{S_T0}, s{S_T0}, 5")
            b(f"s_lshl_b32 s{S_T1}, s{S_T2}, 7")
            b(f"s_add_u32 s{S_T0}, s{S_T0}, s{S_T1}")
            b(f"s_lshl_b32 s{S_T1}, s{S_WID}, 2")
            b(f"s_add_u32 s{S_T0}, s{S_T0}, s{S_T1}")
            b(f"s_mul_i32 s{S_T0}, s{S_T0}, 1280")
            b(f"v_lshlrev_b32 v{V_TMP}, 7, v0")
        b("s_mov_b64 exec, 0xffffffffff" if False else "s_mov_b32 exec_hi, 0xff")
        b(f"buffer_load_dword v134, v{V_TMP}, s[{S_W}:{S_W+3}], s{S_T0} offen")
        b("s_mov_b32 exec_hi, -1")
        ntp = 2
    b(f"s_and_b32 s{S_T0}, s{S_WID}, 1")
    b(f"s_lshl_b32 s{S_T0}, s{S_T0}, 13")
    n_frag_addrs(b, V_AX, S_T0, 65536)
    b(f"s_lshr_b32 s{S_T1}, s{S_WID}, 1")
    if not T:
        b(f"s_lshl_b32 s{S_T0}, s{S_T1}, 12")
        b(f"s_add_u32 s{S_T0}, s{S_T0}, 16384")
        n_frag_addrs(b, V_AW, S_T0, 65536)
    else:
        b(f"v_bfe_u32 v{V_TMP}, v0, 2, 2")
        b(f"v_lshl_add_u32 v{V_TMP+1}, v6, 3, v{V_TMP}")
        b(f"v_lshlrev_b32 v{V_TMP+1}, 8, v{V_TMP+1}")
        b(f"v_xor_b32 v{V_TMP}, s{S_T1}, v{V_TMP}")
        b(f"v_lshl_add_u32 v{V_TMP+1}, v{V_TMP}, 6, v{V_TMP+1}")
        b(f"v_bfe_u32 v{V_TMP}, v0, 4, 1")
        b(f"v_lshl_add_u32 v{V_TMP+1}, v{V_TMP}, 5, v{V_TMP+1}")
        b(f"v_and_b32 v{V_TMP}, 3, v0")
        b(f"v_lshl_add_u32 v{V_TMP+1}, v{V_TMP}, 3, v{V_TMP+1}")
        b(f"v_add_u32 v{V_AW}, 16384, v{V_TMP+1}")
        b(f"v_add_u32 v{V_AW+1}, 65536, v{V_AW}")
    for i in range(32):
        b(f"v_mov_b32 v{V_ACC+i}, 0")

    def fr(t, which):
        return V_FR + t * 12 + which * 4

    def reads(stage, t):
        slot = stage % 4
        hi = slot >= 2
        so = (slot % 2) * SLOT
        ax = V_AX + (4 if hi else 0) + t
        for u in range(2):
            b(f"ds_read_b128 {vr(fr(t, u), 4)}, v{ax} offset:{so + u*4096}")
        if not T:
            aw = V_AW + (4 if hi else 0) + t
            b(f"ds_read_b128 {vr(fr(t, 2), 4)}, v{aw} offset:{so}")
        else:
            aw = V_AW + (1 if hi else 0)
            for a in range(2):
                b(f"ds_read_b64_tr_b16 {vr(fr(t, 2) + 2*a, 2)}, v{aw} offset:{so + (16*t + 4*a)*256}")

    def mfmas(t):
        for u in range(2):
            acc = vr(V_ACC + 16 * u, 16)
            if T:
                b(f"v_mfma_f32_32x32x16_bf16 {acc}, {vr(fr(t, 2), 4)}, {vr(fr(t, u), 4)}, {acc}")
            else:
                b(f"v_mfma_f32_32x32x16_bf16 {acc}, {vr(fr(t, u), 4)}, {vr(fr(t, 2), 4)}, {acc}")

    nr = 4 if T else 3
    stamp(b, 2)
    ncp = 0
    for s in range(NSTAGE):
        b(f"s_waitcnt vmcnt({4 * (min(s + 2, NSTAGE - 1) - s) + (ncp if s <= CP_STAGE + 3 else 0) + (ntp if s <= 2 else 0)})")
        b("s_barrier")
        if s == 0:
            stamp(b, 3)
        for t in range(3):
            reads(s, t)
        if s + 3 < NSTAGE:
            dma(s + 3)
        if s == CP_STAGE:
            ncp = cpref(b)
        if s == 3 and T:
            init_flag(b, V_TMP)
        b(f"s_waitcnt lgkmcnt({2*nr})")
        mfmas(0)
        reads(s, 3)
        b(f"s_waitcnt lgkmcnt({2*nr})")
        mfmas(1)
        b(f"s_waitcnt lgkmcnt({nr})")
        mfmas(2)
        b(f"s_waitcnt lgkmcnt(0)")
        if s == NSTAGE - 1:
            b("s_barrier")
        mfmas(3)
    stamp(b, 4)
    ready_load(b, V_TMP + 2, V_RDY)
    b(f"s_and_b32 s{S_T0}, s{S_WID}, 1")
    b(f"s_lshr_b32 s{S_T1}, s{S_WID}, 1")
    b(f"v_and_b32 v{V_TMP+1}, 15, v0")
    b(f"v_and_b32 v{V_TMP+3}, 1, v4")
    b(f"v_lshlrev_b32 v{V_TMP+3}, 5, v{V_TMP+3}")
    b(f"v_lshl_add_u32 v{V_TMP+3}, v6, 4, v{V_TMP+3}")
    SO = 24
    if T:
        b(f"s_lshl_b32 s{S_T2}, s{S_MT}, 7")
        b(f"s_lshl_b32 s{S_T0}, s{S_T0}, 6")
        b(f"s_add_u32 s{S_T2}, s{S_T2}, s{S_T0}")
        b(f"v_add_u32 v{V_TMP}, s{S_T2}, v{V_TMP+1}")
        b(f"v_mul_u32_u24 v{V_TMP}, 1280, v{V_TMP}")
        b(f"s_lshl_b32 s{S_T2}, s{S_CT}, 8")
        b(f"s_lshl_b32 s{S_T1}, s{S_T1}, 6")
        b(f"s_add_u32 s{S_T2}, s{S_T2}, s{S_T1}")
        b(f"s_add_u32 s{S_T2}, s{S_T2}, {WS_QS}")
        b(f"v_add_u32 v{V_TMP}, s{S_T2}, v{V_TMP}")
        b(f"v_add_u32 v{V_TMP}, v{V_TMP+3}, v{V_TMP}")
        for q in range(4):
            b(f"s_mov_b32 s{SO+q}, {q*16*1280}")
        b(f"s_mov_b32 s{S_T3}, {f32bits(QSCALE)}")
    else:
        b(f"s_lshl_b32 s{S_T2}, s{S_F}, 7")
        b(f"s_lshl_b32 s{S_T1}, s{S_T1}, 5")
        b(f"s_add_u32 s{S_T2}, s{S_T2}, s{S_T1}")
        b(f"v_add_u32 v{V_TMP}, s{S_T2}, v{V_TMP+1}")
        b(f"v_lshlrev_b32 v{V_TMP}, 12, v{V_TMP}")
        b(f"s_lshl_b32 s{S_T2}, s{S_MT}, 8")
        b(f"s_lshl_b32 s{S_T0}, s{S_T0}, 7")
        b(f"s_add_u32 s{S_T2}, s{S_T2}, s{S_T0}")
        b(f"s_add_u32 s{S_T2}, s{S_T2}, {WS_ABT}")
        b(f"v_add_u32 v{V_TMP}, s{S_T2}, v{V_TMP}")
        b(f"v_add_u32 v{V_TMP}, v{V_TMP+3}, v{V_TMP}")
        for q in range(4):
            b(f"s_mov_b32 s{SO+q}, {(q & 1)*65536 + (q >> 1)*64}")
    b("s_nop 3")
    for u in range(2):
        for jp in range(2):
            e = V_EP + (u * 2 + jp) * 4
            a = V_ACC + 16 * u + 8 * jp
            if T:
                for i in range(8):
                    b(f"v_mul_f32 v{a+i}, s{S_T3}, v{a+i}")
            for q in range(4):
                b(f"v_cvt_pk_bf16_f32 v{e+q}, v{a+2*q}, v{a+2*q+1}")
            if not T:
                for q in range(4):
                    b(f"v_xor_b32 v{e+q}, s{S_SGN}, v{e+q}")
            b("s_nop 1")
            b(f"v_permlane32_swap_b32 v{e}, v{e+2}")
            b(f"v_permlane32_swap_b32 v{e+1}, v{e+3}")
        e = V_EP + u * 8
        b("s_nop 0")
        for q in range(4):
            b(f"v_permlane16_swap_b32 v{e+q}, v{e+4+q}")
        for ab in range(2):
            b(f"buffer_store_dwordx4 {vr(e+4*ab, 4)}, v{V_TMP}, s[{S_WS}:{S_WS+3}], s{SO+2*u+ab} offen{SC}")
    b("s_branch f_p1_done")
    return b


KV_WK, KV_WV, KV_GT = 65536, 98304, 131072
P1_LDS = 133120


def kv_path():
    c = Block()
    b = c
    b(f"s_lshl_b32 s{S_T0}, s{S_MT}, 7")
    b(f"s_lshl_b32 s{S_T1}, s{S_WID}, 4")
    b(f"s_add_u32 s{S_T0}, s{S_T0}, s{S_T1}")
    x_dma_offsets(b, None, V_DX, 'x')
    b(f"s_lshl_b32 s{S_M0B}, s{S_WID}, 11")
    b(f"v_lshlrev_b32 v{V_DW}, 4, v0")
    XS = 16384

    def dma(b, stage):
        slot = (stage % 4) * XS
        for j in range(2):
            b(f"s_add_u32 m0, s{S_M0B}, {slot + j*1024}")
            b(f"s_mov_b32 s{S_SOFFX}, {stage*128}")
            b(f"buffer_load_dwordx4 v{V_DX+j}, s[{S_X}:{S_X+3}], s{S_SOFFX} offen{NTX} lds")

    b(f"s_lshl_b32 s{S_T0}, s{S_WID}, 12")
    for base, s_ in ((KV_WK, S_WK), (KV_WV, S_WV)):
        b(f"s_add_u32 m0, s{S_T0}, {base}")
        b("s_nop 0")
        for q in range(4):
            b(f"buffer_load_dwordx4 v{V_DW}, s[{s_}:{s_+3}], s{S_T0} offen offset:{q*1024} lds")
    b(f"s_and_b32 s{S_T1}, s{S_WID}, 1")
    b(f"s_lshl_b32 s{S_T1}, s{S_T1}, 10")
    b(f"s_add_u32 m0, s{S_T1}, {KV_GT}")
    b("s_nop 0")
    b(f"buffer_load_dwordx4 v{V_DW}, s[{S_GT}:{S_GT+3}], s{S_T1} offen lds")
    for s in range(3):
        dma(b, s)
    ntp = touch_x(b)
    b(f"s_and_b32 s{S_T0}, s{S_WID}, 3")
    b(f"s_lshl_b32 s{S_T0}, s{S_T0}, 12")
    n_frag_addrs(b, V_AX, S_T0, 0)
    b(f"v_bfe_u32 v{V_TMP}, v0, 2, 2")
    b(f"v_lshl_add_u32 v{V_TMP+1}, v6, 3, v{V_TMP}")
    b(f"v_mul_u32_u24 v{V_TMP+1}, 40, v{V_TMP+1}")
    b(f"v_bfe_u32 v{V_TMP}, v0, 4, 1")
    b(f"v_lshl_add_u32 v{V_TMP+1}, v{V_TMP}, 5, v{V_TMP+1}")
    b(f"v_and_b32 v{V_TMP}, 3, v0")
    b(f"v_lshl_add_u32 v{V_TMP+1}, v{V_TMP}, 3, v{V_TMP+1}")
    b(f"v_add_u32 v{V_AW}, {KV_WK}, v{V_TMP+1}")
    b(f"v_add_u32 v{V_AW+1}, {KV_WV}, v{V_TMP+1}")
    b(f"v_lshlrev_b32 v{V_AW+2}, 4, v6")
    b(f"v_add_u32 v{V_AW+2}, {KV_GT}, v{V_AW+2}")
    for i in range(32):
        b(f"v_mov_b32 v{V_ACC+i}, 0")
    b(f"s_cmp_ge_u32 s{S_WID}, 4")
    b("s_cbranch_scc1 p1_vpart")

    def fr(t, which):
        return V_FR + t * 12 + which * 4

    def loop(b, isK):
        ncp = 0
        for s in range(NSTAGE):
            b(f"s_waitcnt vmcnt({2 * (min(s + 2, NSTAGE - 1) - s) + (ncp if s <= CP_STAGE + 3 else 0) + (ntp if s <= 2 else 0)})")
            b("s_barrier")
            nr = 4 if isK else 3
            def reads(t):
                b(f"ds_read_b128 {vr(fr(t, 0), 4)}, v{V_AX+t} offset:{(s % 4) * XS}")
                aw = V_AW if isK else V_AW + 1
                for a in range(2):
                    b(f"ds_read_b64_tr_b16 {vr(fr(t, 1) + 2*a, 2)}, v{aw} offset:{(64*s + 16*t + 4*a)*40}")
                if isK:
                    b(f"ds_read_b128 {vr(fr(t, 2), 4)}, v{V_AW+2} offset:{(64*s + 16*t)*2}")
            def mf(t):
                a0, a1 = vr(V_ACC, 16), vr(V_ACC + 16, 16)
                if isK:
                    b(f"v_mfma_f32_32x32x16_bf16 {a0}, {vr(fr(t, 1), 4)}, {vr(fr(t, 0), 4)}, {a0}")
                    b(f"v_mfma_f32_32x32x16_bf16 {a1}, {vr(fr(t, 2), 4)}, {vr(fr(t, 0), 4)}, {a1}")
                else:
                    b(f"v_mfma_f32_32x32x16_bf16 {a0}, {vr(fr(t, 0), 4)}, {vr(fr(t, 1), 4)}, {a0}")
            for t in range(3):
                reads(t)
            if s + 3 < NSTAGE:
                dma(b, s + 3)
            if s == CP_STAGE:
                ncp = cpref(b)
            b(f"s_waitcnt lgkmcnt({2*nr})")
            mf(0)
            reads(3)
            b(f"s_waitcnt lgkmcnt({2*nr})")
            mf(1)
            b(f"s_waitcnt lgkmcnt({nr})")
            mf(2)
            b("s_waitcnt lgkmcnt(0)")
            if s == NSTAGE - 1:
                b("s_barrier")
            mf(3)
        ready_load(b, V_TMP + 3, V_RDY)

    k = Block()
    b = k
    loop(b, True)
    A = V_ACC
    b(f"s_lshl_b32 s{S_T0}, s{S_MT}, 2")
    b(f"s_add_u32 s{S_T0}, s{S_T0}, s{S_WID}")
    b(f"s_lshr_b32 s{S_T1}, s{S_T0}, 1")
    b(f"s_mul_i32 s{S_T1}, s{S_T1}, 6144")
    b(f"s_and_b32 s{S_T2}, s{S_T0}, 1")
    b(f"s_lshl_b32 s{S_T2}, s{S_T2}, 10")
    b(f"s_add_u32 s{S_T1}, s{S_T1}, s{S_T2}")
    b(f"s_add_u32 s{S_T1}, s{S_T1}, {WS_KV}")
    b(f"v_lshlrev_b32 v{V_TMP}, 4, v0")
    b(f"v_add_u32 v{V_TMP}, s{S_T1}, v{V_TMP}")
    b(f"v_lshlrev_b32 v{V_TMP+1}, 3, v5")
    b(f"v_add_u32 v{V_TMP+1}, s{S_T1}, v{V_TMP+1}")
    b(f"v_lshlrev_b32 v{V_TMP+2}, 30, v6")
    b(f"v_or_b32 v{V_TMP+1}, v{V_TMP+1}, v{V_TMP+2}")
    b("s_nop 4")
    e = V_EP
    for q in range(4):
        b(f"v_cvt_pk_bf16_f32 v{e+q}, v{A+2*q}, v{A+2*q+1}")
    b(f"v_cvt_pk_bf16_f32 v{e+4}, v{A+8}, v{A+9}")
    b(f"v_cvt_pk_bf16_f32 v{e+5}, v{A+10}, v{A+11}")
    b(f"buffer_store_dwordx4 {vr(e, 4)}, v{V_TMP}, s[{S_WS}:{S_WS+3}], 0 offen{SC}")
    b(f"buffer_store_dwordx2 {vr(e+4, 2)}, v{V_TMP+1}, s[{S_WS}:{S_WS+3}], 0 offen offset:{2048+768}{SC}")
    n = V_EP + 8
    b(f"v_mul_f32 v{n}, v{A}, v{A}")
    for i in range(1, 8):
        b(f"v_fmac_f32 v{n}, v{A+i}, v{A+i}")
    b(f"v_mul_f32 v{n+1}, v{A+8}, v{A+8}")
    for i in range(9, 12):
        b(f"v_fmac_f32 v{n+1}, v{A+i}, v{A+i}")
    b("v_cmp_eq_u32 vcc, 0, v6")
    b("s_nop 1")
    b(f"v_cndmask_b32 v{n+1}, 0, v{n+1}, vcc")
    b(f"v_add_f32 v{n}, v{n}, v{n+1}")
    b(f"v_mov_b32 v{n+1}, v{n}")
    b("s_nop 1")
    b(f"v_permlane32_swap_b32 v{n}, v{n+1}")
    b("s_nop 1")
    b(f"v_add_f32 v{n}, v{n}, v{n+1}")
    for off in (0x041F, 0x081F, 0x101F, 0x201F, 0x401F):
        b(f"ds_swizzle_b32 v{n+1}, v{n} offset:{off}")
        b("s_waitcnt lgkmcnt(0)")
        b(f"v_max_f32 v{n}, v{n}, v{n+1}")
    b(f"s_lshl_b32 s{S_T1}, s{S_T0}, 6")
    b(f"s_add_u32 s{S_T1}, s{S_T1}, {WS_KMAX}")
    b(f"v_mov_b32 v{n+2}, 0x40000000")
    b("v_cmp_gt_u32 vcc, 16, v0")
    b(f"v_lshlrev_b32 v{n+3}, 2, v0")
    b(f"v_add_u32 v{n+3}, s{S_T1}, v{n+3}")
    b(f"v_cndmask_b32 v{n+2}, v{n+2}, v{n+3}, vcc")
    b(f"buffer_store_dword v{n}, v{n+2}, s[{S_WS}:{S_WS+3}], 0 offen{SC}")
    z = V_EP + 12
    b(f"v_cvt_pk_bf16_f32 v{z}, v{A+16}, v{A+16}")
    b(f"v_lshlrev_b32 v{z}, 16, v{z}")
    b(f"v_mul_f32 v{z}, {-1.4426950408889634!r}, v{z}".replace(repr(-1.4426950408889634), hex(f32bits(-1.4426950408889634))))
    b(f"v_exp_f32 v{z}, v{z}")
    b("s_nop 0")
    b(f"v_add_f32 v{z}, 1.0, v{z}")
    b(f"v_rcp_f32 v{z}, v{z}")
    b("s_nop 0")
    b(f"v_cvt_pk_bf16_f32 v{z}, v{z}, v{z}")
    b(f"v_lshlrev_b32 v{z}, 16, v{z}")
    b(f"s_lshl_b32 s{S_T1}, s{S_T0}, 7")
    b(f"s_add_u32 s{S_T1}, s{S_T1}, {WS_G}")
    b(f"v_lshlrev_b32 v{z+1}, 2, v5")
    b(f"v_add_u32 v{z+1}, s{S_T1}, v{z+1}")
    b(f"v_or_b32 v{z+1}, v{z+1}, v{V_TMP+2}")
    b(f"buffer_store_dword v{z}, v{z+1}, s[{S_WS}:{S_WS+3}], 0 offen{SC}")
    b("s_branch f_p1_done")

    v = Block()
    b = v
    loop(b, False)
    b(f"s_lshl_b32 s{S_T0}, s{S_MT}, 2")
    b(f"s_add_u32 s{S_T0}, s{S_T0}, s{S_WID}")
    b(f"s_sub_u32 s{S_T0}, s{S_T0}, 4")
    b(f"s_lshr_b32 s{S_T1}, s{S_T0}, 1")
    b(f"s_mul_i32 s{S_T1}, s{S_T1}, 6144")
    b(f"s_add_u32 s{S_T1}, s{S_T1}, {WS_KV}")
    b(f"s_and_b32 s{S_T0}, s{S_T0}, 1")
    b(f"s_lshl_b32 s{S_T2}, s{S_T0}, 10")
    b(f"s_add_u32 s{S_T2}, s{S_T2}, 2048")
    b(f"s_mul_i32 s{S_T3}, s{S_T0}, 768")
    b(f"s_add_u32 s{S_T3}, s{S_T3}, 4096")
    b(f"v_mul_u32_u24 v{V_TMP}, 24, v6")
    b(f"v_add_u32 v{V_TMP}, v{V_TMP}, v5")
    b(f"v_lshlrev_b32 v{V_TMP}, 4, v{V_TMP}")
    b(f"v_add_u32 v{V_TMP}, s{S_T1}, v{V_TMP}")
    b(f"v_mov_b32 v{V_TMP+1}, 0x40000000")
    b("v_cmp_gt_u32 vcc, 24, v5")
    b("s_nop 1")
    b(f"v_cndmask_b32 v{V_TMP}, v{V_TMP+1}, v{V_TMP}, vcc")
    b(f"v_mov_b32 v{V_TMP+1}, 0x3f803f80")
    b("v_cmp_eq_u32 vcc, 20, v5")
    b("s_nop 1")
    b(f"v_cndmask_b32 v{V_TMP+1}, 0, v{V_TMP+1}, vcc")
    b("v_cmp_gt_u32 vcc, 20, v5")
    e = V_EP
    for q in range(8):
        b(f"v_cvt_pk_bf16_f32 v{e+q}, v{A+2*q}, v{A+2*q+1}")
    for q in range(8):
        b(f"v_cndmask_b32 v{e+q}, v{V_TMP+1}, v{e+q}, vcc")
    b(f"buffer_store_dwordx4 {vr(e, 4)}, v{V_TMP}, s[{S_WS}:{S_WS+3}], s{S_T2} offen{SC}")
    b(f"buffer_store_dwordx4 {vr(e+4, 4)}, v{V_TMP}, s[{S_WS}:{S_WS+3}], s{S_T3} offen{SC}")
    b("s_branch f_p1_done")
    return c, k, v


def build():
    pro = prologue()
    q = gemm_path('Q')
    f = gemm_path('F')
    c, k, v = kv_path()
    traces = [('Q', pro.l + q.l), ('F', pro.l + f.l), ('K', pro.l + c.l + k.l), ('V', pro.l + c.l + v.l)]
    out = Block()
    out.extend(pro)
    out(f"s_cmp_lt_u32 s{S_CT}, 5")
    out("s_cbranch_scc1 p1_q")
    out(f"s_cmp_eq_u32 s{S_CT}, 15")
    out("s_cbranch_scc1 p1_kv")
    out.extend(f)
    out.label('p1_q')
    out.extend(q)
    out.label('p1_kv')
    out.extend(c)
    out.extend(k)
    out.label('p1_vpart')
    out.extend(v)
    out.label('f_p1_done')
    return out, traces
```

```python
from asmfw import *
from layout import *
from fsync import *
import struct, os

EXPT = os.environ.get("P2X", "")


def f32bits(x):
    return struct.unpack('<I', struct.pack('<f', x))[0]


REG = 4352
SLOT = 8 * REG
NSLOT = 4
NST = 32
XOFF = (1024, 2048, 3328)
POFF = 3072
SCR_G = 0
SCR_A = 122880
P2_LDS = 147456
OBUF = 147456

S_WS, S_C = S_GWS, S_GC
S_WO = 20
S_WID, S_MAT, S_TT, S_ET = S_GW, S_GMAT, S_GTT, S_GET
S_ST, S_NT = 24, 25
S_T0, S_T1, S_T2, S_T3 = 28, 29, 30, 31
S_IT, S_KOFF, S_X2OFF, S_KVOFF, S_INC2, S_M0W = 32, 33, 34, 35, 36, 37
S_KP, S_KQ, S_TH, S_A = 38, 39, 40, 41
S_FB, S_KMAX, S_QROW = 42, 43, 44
S_PM = 46
S_QO = 26
S_MSK2 = 45

V_Q, V_S, V_P, V_O, V_K, V_V = 8, 24, 56, 72, 104, 112
V_GA, V_GC, V_ACC = 124, 144, 148
V_AD = 228
V_D = 240
V_T = 245
NV = 256

MF = "v_mfma_f32_32x32x16_bf16"
CNT = " nt" if 'cnt' in FX else ""
V_PF = 2
V_PJ = 3
S_PF = 16
PFD = int(os.environ.get('PFD', '10'))


def srd(b, s, lo, hi, size):
    b(f"s_mov_b32 s{s}, s{lo}")
    b(f"s_and_b32 s{s+1}, s{hi}, 0xffff")
    b(f"s_mov_b32 s{s+2}, {size}")
    b(f"s_mov_b32 s{s+3}, 0x00020000")


def dma_ops(slot, skipC=False):
    L = []
    ws, c = f"s[{S_WS}:{S_WS+3}]", f"s[{S_C}:{S_C+3}]"
    x = Block()
    x(f"s_add_u32 m0, s{S_M0W}, {slot*SLOT}")
    x(f"s_mov_b64 exec, s[{S_PM}:{S_PM+1}]")
    x(f"buffer_load_dwordx4 v{V_D+3}, {ws}, s{S_KVOFF} offen offset:{POFF}{SC} lds")
    x("s_mov_b64 exec, -1")
    L.append(x)
    x = Block()
    x(f"buffer_load_dwordx4 v{V_D+4}, {ws}, s{S_X2OFF} offen offset:{XOFF[2]}{SC} lds")
    if 'noadv' not in EXPT:
        x(f"s_add_u32 s{S_KVOFF}, s{S_KVOFF}, 6144")
        x(f"s_add_u32 s{S_X2OFF}, s{S_X2OFF}, s{S_INC2}")
        if 'rot' in FX:
            x(f"s_and_b32 s{S_X2OFF}, s{S_X2OFF}, s{S_MSK2}")
    L.append(x)
    x = Block()
    if not skipC:
        x(f"buffer_load_dwordx4 v{V_D+0}, {c}, s{S_KOFF} offen{CNT} lds")
    L.append(x)
    x = Block()
    x(f"buffer_load_dwordx4 v{V_D+1}, {ws}, s{S_KOFF} offen offset:{XOFF[0]}{SC} lds")
    L.append(x)
    x = Block()
    x(f"buffer_load_dwordx4 v{V_D+2}, {ws}, s{S_KOFF} offen offset:{XOFF[1]}{SC} lds")
    if 'noadv' not in EXPT:
        x(f"s_add_u32 s{S_KOFF}, s{S_KOFF}, 128")
        if 'rot' in FX:
            x(f"s_and_b32 s{S_KOFF}, s{S_KOFF}, 4095")
    L.append(x)
    return L


def ad(slot, which):
    return V_AD + 6 * (slot >> 1) + which, (slot & 1) * SLOT


def rdA(x, slot, m):
    v, o = ad(slot, 0)
    x(f"ds_read_b128 {vr(V_GA+4*m, 4)}, v{v} offset:{o + (m & 1)*4*REG + XOFF[m >> 1]}")


def rdC(x, slot):
    v, o = ad(slot, 1)
    x(f"ds_read_b128 {vr(V_GC, 4)}, v{v} offset:{o}")


def rdK(x, slot):
    v, o = ad(slot, 2)
    x(f"ds_read_b128 {vr(V_K, 4)}, v{v} offset:{o}")
    v, o = ad(slot, 3)
    x(f"ds_read_b64 {vr(V_K+4, 2)}, v{v} offset:{o}")


def rdV0(x, slot):
    v, o = ad(slot, 4)
    x(f"ds_read_b128 {vr(V_V, 4)}, v{v} offset:{o}")


def rdV1(x, slot, buf):
    v, o = ad(slot, 5)
    x(f"ds_read_b128 {vr(V_V+4+4*buf, 4)}, v{v} offset:{o}")


def QK(x, c, part):
    if 'noam' in EXPT:
        return
    s = vr(V_S + 16 * c, 16)
    x(f"{MF} {s}, {vr(V_K + 4*part, 4)}, {vr(V_Q + 8*c + 4*part, 4)}, {'0' if part == 0 else s}")


def PV(x, c, part, buf=0):
    if 'noam' in EXPT:
        return
    o = vr(V_O + 16 * c, 16)
    v = V_V if part == 0 else V_V + 4 + 4 * buf
    x(f"{MF} {o}, {vr(v, 4)}, {vr(V_P + 8*c + 4*part, 4)}, {o}")


def GM(x, m):
    if 'nogm' in EXPT:
        return
    a = vr(V_ACC + 16 * m, 16)
    x(f"{MF} {a}, {vr(V_GA + 4*m, 4)}, {vr(V_GC, 4)}, {a}")


def EXP(x, c, i):
    if 'noexp' in EXPT:
        return
    x(f"v_exp_f32 v{V_S+16*c+i}, v{V_S+16*c+i}")


def CVT(x, c, j):
    if 'noexp' in EXPT:
        return
    x(f"v_cvt_pk_bf16_f32 v{V_P+8*c+j}, v{V_S+16*c+2*j}, v{V_S+16*c+2*j+1}")


def set_mslots(b, c, src):
    T = V_T
    qb = V_Q + 8 * c + 4
    b(f"v_sub_f32 v{T}, 0, v{src}")
    b(f"v_and_b32 v{T+1}, 0xffff0000, v{T}")
    b(f"v_sub_f32 v{T+2}, v{T}, v{T+1}")
    b(f"v_and_b32 v{T+3}, 0xffff0000, v{T+2}")
    b(f"v_sub_f32 v{T+2}, v{T+2}, v{T+3}")
    b(f"v_cvt_pk_bf16_f32 v{T+2}, v{T+2}, v{T+2}")
    b(f"v_and_b32 v{T+2}, 0xffff, v{T+2}")
    b(f"v_lshrrev_b32 v{T+1}, 16, v{T+1}")
    b(f"v_or_b32 v{T+1}, v{T+1}, v{T+3}")
    b(f"v_cndmask_b32 v{qb+2}, 0, v{T+1}, vcc")
    b(f"v_cndmask_b32 v{qb+3}, 0, v{T+2}, vcc")


def prologue():
    b = Block()
    T = V_T
    b("s_and_b32 s3, s2, 7")
    b("s_lshr_b32 s4, s2, 3")
    b("s_lshl_b32 s5, s3, 2")
    b("s_lshr_b32 s6, s4, 3")
    b(f"s_add_u32 s{S_ST}, s5, s6")
    b(f"s_and_b32 s{S_NT}, s4, 7")
    b("v_lshrrev_b32 v2, 3, v0")
    b("v_and_b32 v3, 7, v0")
    b("v_lshrrev_b32 v4, 4, v0")
    b("v_and_b32 v5, 31, v0")
    b("v_lshrrev_b32 v6, 5, v0")
    b("v_lshlrev_b32 v7, 4, v0")
    b(f"s_lshr_b32 s{S_KP}, s{S_WID}, 2")
    b(f"s_lshr_b32 s{S_KQ}, s{S_WID}, 1")
    b(f"s_and_b32 s{S_TH}, s{S_WID}, 1")
    b(f"s_and_b32 s{S_A}, s{S_WID}, 3")
    b(f"s_lshl_b32 s{S_T0}, s{S_TH}, 2")
    b(f"v_add_u32 v{T}, s{S_T0}, v4")
    b(f"v_xor_b32 v{T}, v{T}, v3")
    b(f"v_lshlrev_b32 v{T}, 4, v{T}")
    b(f"v_lshl_add_u32 v{T}, v2, 12, v{T}")
    b(f"s_lshl_b32 s{S_T0}, s{S_WID}, 3")
    b(f"s_lshl_b32 s{S_T1}, s{S_TT}, 6")
    b(f"s_add_u32 s{S_T1}, s{S_T1}, s{S_T0}")
    b(f"s_lshl_b32 s{S_T1}, s{S_T1}, 12")
    b(f"v_add_u32 v{V_D+0}, s{S_T1}, v{T}")
    b(f"s_mul_i32 s{S_M0W}, s{S_WID}, {REG}")
    if 'rot' in FX:
        b(f"s_lshl_b32 s{S_KOFF}, s3, 9")
    else:
        b(f"s_mov_b32 s{S_KOFF}, 0")
    c_ = f"s[{S_C}:{S_C+3}]"
    b(f"s_cmp_eq_u32 s{S_WID}, {SYNC_WAVE}")
    b("s_cbranch_scc1 f_s1_entry")
    for st in range(2):
        b(f"s_add_u32 m0, s{S_M0W}, {st*SLOT}")
        b(f"s_add_u32 s5, s{S_KOFF}, {128*st}")
        b(f"buffer_load_dwordx4 v{V_D+0}, {c_}, s5 offen{CNT} lds")
    b(f"s_cmp_lg_u32 s{S_WID}, {SYNC_WAVE-2}")
    b("s_cbranch_scc1 f_s1_n6")
    for st in range(2):
        b(f"s_add_u32 m0, s{S_M0W}, {st*SLOT + 2*REG}")
        b(f"s_add_u32 s5, s{S_KOFF}, {128*st + 65536}")
        b(f"buffer_load_dwordx4 v{V_D+0}, {c_}, s5 offen{CNT} lds")
    b.label("f_s1_n6")
    npf = 2
    if 'nowp0' not in FX:
        npf = 3
        b("s_mul_i32 s5, s4, 25600")
        b(f"s_mul_i32 s6, s{S_WID}, 3712")
        b("s_add_u32 s5, s5, s6")
        b(f"v_lshlrev_b32 v{V_GA+1}, 6, v0")
        b(f"buffer_load_dword v132, v{V_GA+1}, s[{S_WO}:{S_WO+3}], s5 offen")
    b.label("f_s1_entry")
    b(f"s_mul_i32 s{S_T1}, s{S_MAT}, 640")
    b(f"s_mul_i32 s{S_T2}, s{S_ET}, 160")
    b(f"s_add_u32 s{S_T1}, s{S_T1}, s{S_T2}")
    b(f"s_add_u32 s{S_T1}, s{S_T1}, s{S_T0}")
    b(f"s_lshl_b32 s{S_T1}, s{S_T1}, 12")
    b(f"s_add_u32 s{S_T1}, s{S_T1}, {WS_ABT - XOFF[0]}")
    b(f"v_add_u32 v{V_D+1}, s{S_T1}, v{T}")
    b(f"v_add_u32 v{V_D+2}, {(64 << 12) + XOFF[0] - XOFF[1]}, v{V_D+1}")
    b(f"v_add_u32 v{V_D+4}, {(128 << 12) + XOFF[0] - XOFF[2]}, v{V_D+1}")
    b(f"s_lshl_b32 s{S_T1}, s{S_A}, 10")
    b(f"s_add_u32 s{S_T1}, s{S_T1}, {WS_KV - XOFF[2]}")
    b(f"v_add_u32 v{T+1}, s{S_T1}, v7")
    b(f"s_cmp_lt_u32 s{S_WID}, 4")
    b("s_cselect_b64 vcc, -1, 0")
    b(f"s_cselect_b32 s{S_INC2}, 1, 48")
    b(f"s_min_u32 s{S_T1}, s{S_WID}, 5")
    b(f"v_cndmask_b32 v{V_D+4}, v{T+1}, v{V_D+4}, vcc")
    b(f"s_lshl_b32 s{S_T1}, s{S_T1}, 8")
    b(f"s_add_u32 s{S_T1}, s{S_T1}, {WS_KV + 4096 - POFF}")
    b(f"v_add_u32 v{V_D+3}, s{S_T1}, v7")
    b(f"s_lshl_b32 s{S_INC2}, s{S_INC2}, 7")
    if 'rot' in FX:
        b(f"s_cmp_lt_u32 s{S_WID}, 4")
        b(f"s_cselect_b32 s{S_X2OFF}, s{S_KOFF}, 0")
        b(f"s_movk_i32 s{S_MSK2}, 4095")
        b(f"s_cselect_b32 s{S_MSK2}, s{S_MSK2}, -1")
    else:
        b(f"s_mov_b32 s{S_X2OFF}, 0")
    b(f"s_mov_b32 s{S_KVOFF}, 0")
    b(f"s_mov_b64 s[{S_PM}:{S_PM+1}], 0xffff")
    b("s_lshl_b32 s3, s3, 8")
    b("s_lshl_b32 s4, s4, 3")
    b("s_add_u32 s3, s3, s4")
    b(f"s_lshl_b32 s{S_T0}, s{S_A}, 1")
    b(f"s_add_u32 s3, s3, s{S_T0}")
    b(f"s_add_u32 s{S_QROW}, s3, s{S_KP}")
    b(f"s_xor_b32 s{S_T1}, s{S_QROW}, 1")
    b(f"s_mul_i32 s{S_QO}, s{S_QROW}, 1280")
    b(f"s_mul_i32 s{S_QO+1}, s{S_T1}, 1280")
    b(f"v_mul_u32_u24 v{T}, 40, v5")
    b(f"v_lshl_add_u32 v{T+1}, v6, 3, v{T}")
    if WS_QS:
        b(f"v_add_u32 v{T+1}, {WS_QS}, v{T+1}")
    b(f"v_lshlrev_b32 v{T+2}, 30, v6")
    b(f"v_or_b32 v{T+2}, v{T+2}, v{T+1}")
    b(f"v_lshlrev_b32 v{T+3}, 6, v0")
    A = V_AD
    b(f"s_lshl_b32 s{S_T0}, s{S_KQ}, 3")
    b(f"v_xor_b32 v{T}, s{S_T0}, v5")
    b(f"s_lshl_b32 s{S_T1}, s{S_KQ}, 1")
    b(f"v_add_u32 v{T+4}, s{S_T1}, v6")
    b(f"s_mul_i32 s{S_T2}, s{S_TH}, {4*REG}")
    for which, row in ((0, T), (1, 5)):
        b(f"v_bfe_u32 v{T+5}, v{row}, 1, 3")
        b(f"v_xor_b32 v{T+5}, v{T+5}, v{T+4}")
        b(f"v_lshlrev_b32 v{T+5}, 4, v{T+5}")
        b(f"v_lshl_add_u32 v{T+5}, v3, 7, v{T+5}")
        b(f"v_lshrrev_b32 v{T+6}, 3, v{row}")
        b(f"v_mul_u32_u24 v{T+6}, {REG}, v{T+6}")
        b(f"v_add_u32 v{A+which}, v{T+5}, v{T+6}")
    b(f"v_add_u32 v{A+1}, s{S_T2}, v{A+1}")
    b(f"s_mul_i32 s{S_T0}, s{S_KP}, {REG}")
    b(f"s_add_u32 s{S_T1}, s{S_T0}, {4*REG + XOFF[2]}")
    b(f"v_add_u32 v{A+2}, s{S_T1}, v7")
    b(f"s_add_u32 s{S_T1}, s{S_T0}, {6*REG + XOFF[2] + 768}")
    b(f"v_lshlrev_b32 v{T}, 3, v5")
    b(f"v_add_u32 v{A+3}, s{S_T1}, v{T}")
    b(f"v_add_u32 v{T}, 4, v5")
    b(f"v_lshrrev_b32 v{T}, 5, v{T}")
    b(f"v_xor_b32 v{T}, v{T}, v6")
    b(f"v_mul_u32_u24 v{T}, 24, v{T}")
    b(f"v_min_u32 v{T+4}, 23, v5")
    b(f"v_add_u32 v1, v{T}, v{T+4}")
    b(f"s_add_u32 s{S_T1}, s{S_T0}, {6*REG + XOFF[2]}")
    b(f"v_lshlrev_b32 v{T}, 4, v1")
    b(f"v_add_u32 v{A+4}, s{S_T1}, v{T}")
    b(f"s_mul_i32 s{S_T1}, s{S_KP}, {3*REG}")
    b(f"s_add_u32 s{S_T1}, s{S_T1}, {POFF}")
    b(f"v_lshrrev_b32 v{T}, 4, v1")
    b(f"v_mul_u32_u24 v{T}, {REG}, v{T}")
    b(f"v_and_b32 v{T+4}, 15, v1")
    b(f"v_lshl_add_u32 v{T}, v{T+4}, 4, v{T}")
    b(f"v_add_u32 v{A+5}, s{S_T1}, v{T}")
    for i in range(6):
        b(f"v_add_u32 v{A+6+i}, {2*SLOT}, v{A+i}")
    for i in range(80):
        b(f"v_mov_b32 v{V_ACC+i}, 0")
    for i in range(32):
        b(f"v_mov_b32 v{V_O+i}, 0")
    for i in range(4):
        b(f"v_mov_b32 v{V_P+12+i}, 0")
        b(f"v_mov_b32 v{V_V+8+i}, 0")
    b(f"v_mov_b32 v{V_K+6}, 0x3f803f80")
    b(f"v_mov_b32 v{V_K+7}, 0x00003f80")
    b(f"s_mov_b32 s{S_FB}, 0")
    b(f"s_mov_b32 s{S_IT}, 0")
    b(f"s_waitcnt vmcnt({npf + 2})")
    b(f"s_cmp_eq_u32 s{S_WID}, {SYNC_WAVE-2}")
    b("s_cbranch_scc1 f_s1_w")
    b(f"s_waitcnt vmcnt({npf})")
    b(f"s_cmp_lg_u32 s{S_WID}, {SYNC_WAVE}")
    b("s_cbranch_scc1 f_s1_w")
    b("s_waitcnt vmcnt(0)")
    b.label("f_s1_w")
    stamp(b, 5)
    stamp(b, 6, True)
    stamp_store(b, 0, S_WS, S_WID, V_GA)
    b("s_barrier")
    sync1(b, 130, V_GA)
    b(f"s_lshl_b32 s4, s{S_TT}, 2")
    b(f"s_add_u32 s4, s4, s{S_ET}")
    b("s_lshl_b32 s4, s4, 3")
    b(f"s_add_u32 s4, s4, s{S_WID}")
    b("s_lshl_b32 s4, s4, 13")
    b(f"v_lshrrev_b32 v{V_PJ}, 2, v0")
    b(f"v_lshlrev_b32 v{V_PJ}, 12, v{V_PJ}")
    b(f"v_and_b32 v{V_PF}, 3, v0")
    b(f"v_lshl_add_u32 v{V_PF}, v{V_PF}, 7, v{V_PJ}")
    b(f"v_add_u32 v{V_PF}, s4, v{V_PF}")
    b("v_cmp_gt_u32 vcc, 8, v0")
    b(f"v_mov_b32 v{V_PJ}, 0x40000000")
    b(f"s_add_u32 s{S_PF}, s{S_KOFF}, {PFD*128}")
    b(f"s_and_b32 s{S_PF}, s{S_PF}, 4095")
    b(f"v_cndmask_b32 v{V_PF}, v{V_PJ}, v{V_PF}, vcc")
    if 'noprio' not in FX:
        b("s_setprio 3")
    b("s_barrier")
    stamp(b, 0)
    stamp(b, 1, True)
    ws = f"s[{S_WS}:{S_WS+3}]"
    for x in dma_ops(0, True):
        b.extend(x)
    b(f"s_mov_b32 s3, {WS_KMAX}")
    for c in range(2):
        q = V_Q + 8 * c
        so = S_QO + c
        b(f"buffer_load_dwordx2 {vr(q, 2)}, v{T+1}, {ws}, s{so} offen{SC}")
        b(f"buffer_load_dwordx2 {vr(q+2, 2)}, v{T+1}, {ws}, s{so} offen offset:16{SC}")
        b(f"buffer_load_dwordx2 {vr(q+4, 2)}, v{T+2}, {ws}, s{so} offen offset:32{SC}")
    b(f"buffer_load_dword v{T+8}, v{T+3}, {ws}, s3 offen{SC}")
    b("s_setprio 0")
    for x in dma_ops(1, True):
        b.extend(x)
    stamp(b, 2)
    b("s_waitcnt vmcnt(4)")
    b("s_barrier")
    stamp(b, 3)
    rdK(b, 0)
    rdV0(b, 0)
    rdV1(b, 0, 0)
    rdC(b, 0)
    for m in range(5):
        rdA(b, 0, m)
    for x in dma_ops(2):
        b.extend(x)
    k = T + 8
    for ctl in ("quad_perm:[1,0,3,2]", "quad_perm:[2,3,0,1]", "row_half_mirror", "row_mirror"):
        b("s_nop 1")
        b(f"v_max_f32_dpp v{k}, v{k}, v{k} {ctl} row_mask:0xf bank_mask:0xf")
    for c in range(2):
        q = V_Q + 8 * c
        n = T + 9 + c
        for r in range(6):
            b(f"v_lshlrev_b32 v{T}, 16, v{q+r}")
            b(f"v_and_b32 v{T+1}, 0xffff0000, v{q+r}")
            if r == 0:
                b(f"v_mul_f32 v{n}, v{T}, v{T}")
            else:
                b(f"v_fmac_f32 v{n}, v{T}, v{T}")
            b(f"v_fmac_f32 v{n}, v{T+1}, v{T+1}")
        b(f"v_mov_b32 v{T}, v{n}")
        if c == 0:
            b(f"v_readlane_b32 s{S_T0}, v{k}, 0")
            b(f"v_readlane_b32 s{S_T1}, v{k}, 16")
        else:
            b(f"v_readlane_b32 s{S_T2}, v{k}, 32")
            b(f"v_readlane_b32 s{S_T3}, v{k}, 48")
        b(f"v_permlane32_swap_b32 v{n}, v{T}")
        b("s_nop 1")
        b(f"v_add_f32 v{n}, v{n}, v{T}")
    b(f"s_max_u32 s{S_T0}, s{S_T0}, s{S_T1}")
    b(f"s_max_u32 s{S_T2}, s{S_T2}, s{S_T3}")
    b(f"s_max_u32 s{S_KMAX}, s{S_T0}, s{S_T2}")
    b("v_cmp_eq_u32 vcc, 0, v6")
    for c in range(2):
        n = T + 9 + c
        b(f"v_mul_f32 v{n}, s{S_KMAX}, v{n}")
        b(f"v_sqrt_f32 v{n}, v{n}")
        b("s_nop 0")
        b(f"v_mul_f32 v{n}, {hex(f32bits(1.02))}, v{n}")
        set_mslots(b, c, n)
    b("s_waitcnt lgkmcnt(8)")
    QK(b, 0, 0)
    QK(b, 0, 1)
    for x in dma_ops(3):
        b.extend(x)
    b("s_nop 3")
    return b


PRIO = {
    'p0': {},
    'pa': {3: 3, 7: 2, 11: 1, 1: 0},
    'pb': {3: 3, 9: 2, 0: 1, 2: 0},
    'pc': {3: 3, 8: 2, 12: 1, 1: 0},
    'pd': {3: 2, 10: 1, 1: 0},
}


def iteration(b, u, dma, vm, nxt=True, tail=None):
    ns = (u + 1) % 4
    if 'nodma' in EXPT:
        dma = False
        vm = 0
    if 'novm' in EXPT and vm:
        vm = 40
    rd = nxt and 'nord' not in EXPT
    vb, nvb = u & 1, (u + 1) & 1
    D = dma_ops(u) if dma else [Block() for _ in range(5)]
    prio = PRIO['pb']
    for k, v in PRIO.items():
        if k in EXPT.split('_'):
            prio = v

    def blk(f, *a):
        x = Block()
        f(x, *a)
        return x
    R = lambda f, *a: blk(f, *a) if rd else Block()
    W = lambda s: blk(lambda x: x(s))
    N = Block()
    sl = [
        ([], blk(PV, 1, 1, nvb), "e0.0 e0.1 e0.2"),
        ([], blk(QK, 1, 0), "e0.3 e0.4 c0.0 c0.1"),
        ([], blk(QK, 1, 1), "e0.5 e0.6 BAR e0.7"),
        ([R(rdK, ns)], blk(GM, 0), "c0.2 c0.3 e0.8 e0.9"),
        ([R(rdA, ns, 0)], blk(PV, 0, 0), "e0.10 e0.11 e0.12"),
        ([R(rdV1, ns, nvb)], blk(GM, 1), "c0.4 c0.5 e0.13 e0.14"),
        ([R(rdA, ns, 1)], blk(GM, 2), "e0.15 c0.6 c0.7 e1.0"),
        ([R(rdA, ns, 2) if rd else W("s_nop 0")], blk(PV, 0, 1, vb), "e1.1 e1.2 e1.3"),
        ([W("s_waitcnt lgkmcnt(4)") if nxt else N], blk(QK, 0, 0) if nxt else N, "c1.0 c1.1 e1.4 e1.5"),
        ([], blk(QK, 0, 1) if nxt else N, "e1.6 e1.7 c1.2 c1.3"),
        ([], blk(GM, 3), "e1.8 e1.9 e1.10"),
        ([R(rdA, ns, 3)], blk(GM, 4), "e1.11 e1.12 c1.4 c1.5"),
        ([R(rdA, ns, 4), R(rdC, ns)], blk(PV, 1, 0), "e1.13 e1.14 e1.15 c1.6 c1.7"),
    ]
    dpos = (4, 6, 8, 10, 12)
    if 'd1' in EXPT.split('_'):
        dpos = (4, 6, 8, 10, 12)
    if 'd2' in EXPT.split('_'):
        dpos = (3, 5, 8, 9, 10)
    if 'd3' in EXPT.split('_'):
        dpos = (4, 7, 9, 10, 12)
    if dma and u == 0 and 'cpl' in FX:
        D[4](f"buffer_load_dword v{V_PJ}, v{V_PF}, s[{S_C}:{S_C+3}], s{S_PF} offen")
        D[4](f"s_add_u32 s{S_PF}, s{S_PF}, 512")
        D[4](f"s_and_b32 s{S_PF}, s{S_PF}, 4095")
    for k in range(5):
        sl[dpos[k]][0].insert(0, D[k])
    for i, (pre, mf, va) in enumerate(sl):
        for x in pre:
            b.extend(x)
        b.extend(mf)
        if i in prio and i != 3:
            b(f"s_setprio {prio[i]}")
        for t in va.split():
            if t == 'BAR':
                b(f"s_waitcnt vmcnt({vm}) lgkmcnt(0)" if vm is not None else "s_waitcnt lgkmcnt(0)")
                if 'nobar' not in EXPT:
                    b("s_barrier")
                if 3 in prio:
                    b(f"s_setprio {prio[3]}")
                continue
            c, k = t[1:].split('.')
            (EXP if t[0] == 'e' else CVT)(b, int(c), int(k))
    if rd:
        rdV0(b, ns)
    if tail:
        tail(b)
    else:
        b("s_nop 0" if rd else "s_nop 1")


def epilogue():
    post, fb = Block(), Block()
    T = V_T
    ws = f"s[{S_WS}:{S_WS+3}]"
    b = post
    PV(b, 1, 1, 1)
    stamp(b, 4)
    b("s_waitcnt vmcnt(0)")
    b(f"s_lshl_b32 s{S_T0}, s{S_TH}, 2")
    for j in range(1, 4):
        b(f"s_xor_b32 s{S_T1}, s{S_KQ}, {j}")
        b(f"s_add_u32 s{S_T1}, s{S_T1}, s{S_T0}")
        b(f"s_mul_i32 s{S_T1}, s{S_T1}, {3*5120}")
        b(f"s_add_u32 s{S_T1}, s{S_T1}, {SCR_G + (j-1)*5120}")
        b(f"v_add_u32 v{T+j}, s{S_T1}, v7")
    b(f"s_add_u32 s{S_T1}, s{S_KQ}, s{S_T0}")
    b(f"s_mul_i32 s{S_T1}, s{S_T1}, {3*5120}")
    b(f"v_add_u32 v{T}, s{S_T1}, v7")
    for m in range(5):
        for j in range(1, 4):
            b(f"ds_write_b128 v{T+j}, {vr(V_ACC+16*m+4*j, 4)} offset:{m*1024}")
        if m == 3:
            b("s_waitcnt lgkmcnt(4)")
    b(f"s_xor_b32 s{S_T1}, s{S_WID}, 4")
    b(f"s_mul_i32 s{S_T1}, s{S_T1}, 3072")
    b(f"s_add_u32 s{S_T1}, s{S_T1}, {SCR_A}")
    b(f"v_add_u32 v{T+4}, s{S_T1}, v7")
    b(f"s_mul_i32 s{S_T1}, s{S_WID}, 3072")
    b(f"s_add_u32 s{S_T1}, s{S_T1}, {SCR_A}")
    b(f"v_add_u32 v{T+5}, s{S_T1}, v7")
    for i in range(3):
        b(f"ds_write_b128 v{T+4}, {vr(V_O+16+4*i, 4)} offset:{i*1024}")
    b(f"s_mul_i32 s{S_T1}, s{S_MAT}, 2621440")
    b(f"s_lshl_b32 s{S_T2}, s{S_TT}, 2")
    b(f"s_lshl_b32 s{S_T3}, s{S_TH}, 1")
    b(f"s_add_u32 s{S_T2}, s{S_T2}, s{S_T3}")
    b(f"s_mul_i32 s{S_T2}, s{S_T2}, 20480")
    b(f"s_add_u32 s{S_T1}, s{S_T1}, s{S_T2}")
    b(f"s_mul_i32 s{S_T2}, s{S_ET}, 5120")
    b(f"s_add_u32 s{S_T1}, s{S_T1}, s{S_T2}")
    b(f"s_add_u32 s{S_T1}, s{S_T1}, {WS_Y}")
    b(f"v_and_b32 v{T+6}, 1, v4")
    b(f"v_mul_u32_u24 v{T+6}, 20480, v{T+6}")
    b(f"v_add_u32 v{T+6}, s{S_T1}, v{T+6}")
    b(f"v_and_b32 v{T+7}, 15, v0")
    b(f"v_lshl_add_u32 v{T+7}, v6, 4, v{T+7}")
    b(f"s_lshl_b32 s{S_T2}, s{S_KQ}, 5")
    b(f"v_add_u32 v{T+7}, s{S_T2}, v{T+7}")
    b(f"v_lshl_add_u32 v{T+10}, v{T+7}, 3, v{T+6}")
    b(f"v_lshl_add_u32 v{T+6}, v{T+7}, 4, v{T+6}")
    b("s_waitcnt lgkmcnt(0)")
    b("s_barrier")
    R = V_S
    for i in range(3):
        b(f"ds_read_b128 {vr(R+4*i, 4)}, v{T+5} offset:{i*1024}")
    for m in range(4):
        for j in range(1, 4):
            b(f"ds_read_b128 {vr(V_ACC+16*m+4*j, 4)}, v{T} offset:{(j-1)*5120 + m*1024}")
    b("s_waitcnt lgkmcnt(12)")
    for j in range(1, 4):
        b(f"ds_read_b128 {vr(V_ACC+16*4+4*j, 4)}, v{T} offset:{(j-1)*5120 + 4*1024}")
    for i in range(12):
        b(f"v_add_f32 v{V_O+i}, v{V_O+i}, v{R+i}")
    WD = V_GA
    b(f"s_lshl_b32 s{S_T0}, s{S_WID}, 6")
    b(f"v_add_u32 v{T+8}, s{S_T0}, v0")
    for j in range(15):
        if j:
            b(f"v_add_u32 v{T+8}, 448, v{T+8}")
        b(f"v_mul_u32_u24 v{T+9}, 6554, v{T+8}")
        b(f"v_lshrrev_b32 v{T+9}, 16, v{T+9}")
        b(f"v_mul_u32_u24 v{T+9}, 1120, v{T+9}")
        b(f"v_lshl_add_u32 v{WD+j}, v{T+8}, 4, v{T+9}")
    for m in range(5):
        b(f"s_waitcnt lgkmcnt({12 - 3*m})")
        a = V_ACC + 16 * m
        for r in range(4):
            b(f"v_add_f32 v{a+r}, v{a+r}, v{a+4+r}")
            b(f"v_add_f32 v{a+8+r}, v{a+8+r}, v{a+12+r}")
        for r in range(4):
            b(f"v_add_f32 v{a+r}, v{a+r}, v{a+8+r}")
        d = a if m in (0, 2, 3) else a - 14
        b(f"v_cvt_pk_bf16_f32 v{d}, v{a}, v{a+1}")
        b(f"v_cvt_pk_bf16_f32 v{d+1}, v{a+2}, v{a+3}")
        if m == 2:
            b(f"buffer_store_dwordx2 {vr(a, 2)}, v{T+10}, {ws}, 0 offen offset:2048{SC}")
        elif m in (1, 4):
            b(f"buffer_store_dwordx4 {vr(a-16, 4)}, v{T+6}, {ws}, 0 offen offset:{3072 if m == 4 else 0}{SC}")
    b.label("p2_norm")
    L = T + 8
    b(f"v_mov_b32 v{L}, v{V_O+8}")
    b(f"v_mov_b32 v{T}, v{V_O+8}")
    b("s_nop 1")
    b(f"v_permlane32_swap_b32 v{T}, v{L}")
    b(f"s_mov_b32 s{S_T0}, {hex(f32bits(2.0**-64))}")
    b("s_nop 0")
    b(f"v_cmp_nle_f32 vcc, s{S_T0}, v{L}")
    b(f"s_cmp_lg_u32 s{S_FB}, 0")
    b("s_cbranch_scc1 p2_store")
    if 'no' not in EXPT:
        b("s_cbranch_vccnz p2_fallback")
    b.label("p2_store")
    b(f"s_lshr_b32 s3, s{S_QROW}, 4")
    b("s_mul_i32 s3, s3, 20480")
    b(f"s_and_b32 s4, s{S_QROW}, 15")
    b("s_lshl_b32 s4, s4, 6")
    b("s_add_u32 s3, s3, s4")
    b(f"s_add_u32 s3, s3, {WS_O}")
    AD = T + 4
    b(f"v_rcp_f32 v{L}, v{L}")
    b(f"s_mul_i32 s4, s{S_WID}, 1536")
    b(f"s_add_u32 s4, s4, {OBUF}")
    b(f"v_mul_u32_u24 v{T}, 5, v5")
    b(f"v_add_u32 v{T}, v{T}, v6")
    b("v_cmp_eq_u32 vcc, 0, v6")
    for i in range(3):
        if i:
            b(f"v_add_u32 v{T+1}, {2*i}, v{T}")
        else:
            b(f"v_mov_b32 v{T+1}, v{T}")
        b(f"v_lshrrev_b32 v{T+2}, 1, v{T+1}")
        b(f"v_xor_b32 v{T+2}, v{T+2}, v{T+1}")
        b(f"v_and_b32 v{T+2}, 1, v{T+2}")
        b(f"v_mul_u32_u24 v{T+2}, 3, v{T+2}")
        b(f"v_xor_b32 v{T+1}, v{T+1}, v{T+2}")
        if i == 2:
            b(f"v_add_u32 v{T+2}, 160, v5")
            b(f"v_cndmask_b32 v{T+1}, v{T+2}, v{T+1}, vcc")
        b(f"v_lshlrev_b32 v{T+1}, 3, v{T+1}")
        b(f"v_add_u32 v{AD+i}, s4, v{T+1}")
    o = V_O
    for i in range(12):
        b(f"v_mul_f32 v{o+i}, v{o+i}, v{L}")
    for i in range(6):
        b(f"v_cvt_pk_bf16_f32 v{V_S+i}, v{o+2*i}, v{o+2*i+1}")
    for i in range(3):
        b(f"ds_write_b64 v{AD+i}, {vr(V_S+2*i, 2)}")
    b(f"v_add_u32 v{T}, s4, v7")
    b(f"v_lshrrev_b32 v{T+1}, 2, v0")
    b(f"v_mul_u32_u24 v{T+1}, {1024 - 64}, v{T+1}")
    b(f"v_add_u32 v{T+1}, v{T+1}, v7")
    b(f"v_add_u32 v{T+1}, s3, v{T+1}")
    b("v_cmp_gt_u32 vcc, 16, v0")
    b(f"v_add_u32 v{T+2}, 16384, v{T+1}")
    b(f"v_mov_b32 v{T+3}, 0x40000000")
    b("s_waitcnt lgkmcnt(0)")
    b(f"ds_read_b128 {vr(V_S+8, 4)}, v{T}")
    b(f"ds_read_b128 {vr(V_S+12, 4)}, v{T} offset:1024")
    b(f"v_cndmask_b32 v{T+2}, v{T+3}, v{T+2}, vcc")
    b("s_waitcnt lgkmcnt(1)")
    b(f"buffer_store_dwordx4 {vr(V_S+8, 4)}, v{T+1}, {ws}, 0 offen{SC}")
    b("s_waitcnt lgkmcnt(0)")
    b(f"buffer_store_dwordx4 {vr(V_S+12, 4)}, v{T+2}, {ws}, 0 offen{SC}")
    b(f"s_lshl_b32 s{S_T0}, s{S_WID}, 10")
    b(f"s_mul_i32 s{S_T1}, s{S_NT}, 160")
    b("s_barrier")
    b(f"s_cmp_eq_u32 s{S_WID}, {SYNC_WAVE}")
    b("s_cbranch_scc1 f_p2_done")
    for j in range(15):
        if j == 14:
            b(f"s_cmp_ge_u32 s{S_WID}, 2")
            b("s_cbranch_scc1 f_p2_done")
        b(f"s_add_u32 m0, s{S_T0}, {j*7168}")
        b("s_nop 0")
        b(f"buffer_load_dwordx4 v{WD+j}, s[{S_WO}:{S_WO+3}], s{S_T1} offen lds")
    b("s_branch f_p2_done")

    b = fb
    M = T + 9
    G1, G2, G0, G3 = V_AD, V_AD + 1, V_AD + 2, V_AD + 3
    b.label("p2_fallback")
    b(f"s_mov_b32 s{S_FB}, 1")
    b(f"v_mov_b32 v{G1}, v7")
    b(f"v_lshlrev_b32 v{G2}, 3, v5")
    b(f"v_add_u32 v{G2}, {2048 + 768}, v{G2}")
    b(f"v_lshlrev_b32 v{G0}, 4, v1")
    b(f"v_add_u32 v{G3}, 4096, v{G0}")
    b(f"v_add_u32 v{G0}, 2048, v{G0}")
    b(f"v_mov_b32 v{V_Q+6}, 0")
    b(f"v_mov_b32 v{V_Q+7}, 0")
    b(f"v_mov_b32 v{M}, 0xff800000")
    b(f"s_mov_b32 s{S_T0}, {WS_KV}")
    fb1 = Block()
    x = fb1
    x.label("p2_fb1")
    for kp in range(2):
        x(f"buffer_load_dwordx4 {vr(V_K, 4)}, v{G1}, {ws}, s{S_T0} offen offset:{kp*1024}{SC}")
        x(f"buffer_load_dwordx2 {vr(V_K+4, 2)}, v{G2}, {ws}, s{S_T0} offen offset:{kp*1024}{SC}")
        x("s_waitcnt vmcnt(0)")
        QK(x, 0, 0)
        QK(x, 0, 1)
        x("s_nop 7")
        x("s_nop 7")
        for i in range(0, 16, 2):
            x(f"v_max3_f32 v{M}, v{M}, v{V_S+i}, v{V_S+i+1}")
    x(f"s_add_u32 s{S_T0}, s{S_T0}, 6144")
    x(f"s_cmp_lt_u32 s{S_T0}, {WS_KV + 32*6144}")
    x("s_cbranch_scc1 p2_fb1")
    mid = Block()
    x = mid
    x(f"v_mov_b32 v{T+6}, v{M}")
    x("v_cmp_eq_u32 vcc, 0, v6")
    x("s_nop 0")
    x(f"v_permlane32_swap_b32 v{M}, v{T+6}")
    x("s_nop 1")
    x(f"v_max_f32 v{M}, v{M}, v{T+6}")
    set_mslots(x, 0, M)
    for i in range(16):
        x(f"v_mov_b32 v{V_O+i}, 0")
    x(f"s_mov_b32 s{S_T0}, {WS_KV}")
    fb2 = Block()
    x = fb2
    x.label("p2_fb2")
    for kp in range(2):
        x(f"buffer_load_dwordx4 {vr(V_K, 4)}, v{G1}, {ws}, s{S_T0} offen offset:{kp*1024}{SC}")
        x(f"buffer_load_dwordx2 {vr(V_K+4, 2)}, v{G2}, {ws}, s{S_T0} offen offset:{kp*1024}{SC}")
        x(f"buffer_load_dwordx4 {vr(V_V, 4)}, v{G0}, {ws}, s{S_T0} offen offset:{kp*1024}{SC}")
        x(f"buffer_load_dwordx4 {vr(V_V+4, 4)}, v{G3}, {ws}, s{S_T0} offen offset:{kp*768}{SC}")
        x("s_waitcnt vmcnt(0)")
        QK(x, 0, 0)
        QK(x, 0, 1)
        x("s_nop 7")
        x("s_nop 7")
        for i in range(16):
            EXP(x, 0, i)
        x("s_nop 0")
        for j in range(8):
            CVT(x, 0, j)
        x("s_nop 1")
        PV(x, 0, 0)
        PV(x, 0, 1, 0)
    x(f"s_add_u32 s{S_T0}, s{S_T0}, 6144")
    x(f"s_cmp_lt_u32 s{S_T0}, {WS_KV + 32*6144}")
    x("s_cbranch_scc1 p2_fb2")
    x("s_nop 7")
    x("s_nop 7")
    x("s_branch p2_norm")
    return post, (fb, fb1, mid, fb2)


def build():
    pro = prologue()
    body = Block()
    body.label("p2_loop")

    def loopctl(b):
        b(f"s_add_u32 s{S_IT}, s{S_IT}, 1")
        b(f"s_cmp_lt_u32 s{S_IT}, {NST//4 - 1}")
        b("s_cbranch_scc1 p2_loop")
    for u in range(4):
        iteration(body, u, True, 10 + (1 if u and 'cpl' in FX else 0), tail=loopctl if u == 3 else None)
    tailb = Block()
    nw = 0
    if 'nowp' not in FX:
        nw = 1
        tailb("s_lshr_b32 s3, s2, 3")
        tailb("s_lshl_b32 s3, s3, 3")
        tailb(f"s_add_u32 s3, s3, s{S_WID}")
        tailb("s_mul_i32 s3, s3, 3200")
        tailb(f"v_lshlrev_b32 v{V_T}, 6, v0")
        tailb(f"buffer_load_dword v{V_T+1}, v{V_T}, s[{S_WO}:{S_WO+3}], s3 offen")
    iteration(tailb, 0, False, 10 + nw)
    iteration(tailb, 1, False, 5 + nw)
    iteration(tailb, 2, False, 0 + nw)
    iteration(tailb, 3, False, None, nxt=False)
    post, (fb, fb1, mid, fb2) = epilogue()
    idx = post.l.index('p2_store:')
    nidx = post.l.index('p2_norm:')
    traces = [('N', pro.l + body.l + body.l + tailb.l + post.l),
              ('FB', pro.l + body.l + tailb.l + post.l[:idx] + fb.l + fb1.l + fb1.l + mid.l + fb2.l + fb2.l + post.l[nidx:])]
    out = Block()
    out.extend(pro).extend(body).extend(tailb).extend(post)
    out.extend(fb).extend(fb1).extend(mid).extend(fb2)
    out.label("f_p2_done")
    return out, traces
```

```python
from asmfw import *
from layout import *
from fsync import *
import os

S_WS, S_OUT, S_WO = S_GWS, 16, 20
S_WID, S_ST, S_NT = S_GW, 24, 25
S_T0, S_T1, S_T2, S_T3 = 32, 33, 34, 35
S_H, S_SB, S_OK, S_YU, S_YW, S_HF, S_GA = 36, 37, 38, 39, 40, 41, 42

V_O = 8
V_ACC = 48
V_A = 68
V_Y = 168
V_T2 = 120
V_YA, V_AD2, V_OA2 = 137, 138, 139
V_WD = 184
COL = (0, 64, 0, 32, 96)
V_G = 132
V_AD = 134
V_X = 135
V_R = 140
V_T = 152
V_SY = 160
MF = "v_mfma_f32_16x16x32_bf16"
XCH = 102400


def build():
    b = Block()
    T = V_T
    ws = WS
    b("s_load_dwordx2 s[10:11], s[0:1], 88")
    b("v_and_b32 v2, 15, v0")
    b("v_lshrrev_b32 v3, 4, v0")
    b(f"s_lshr_b32 s{S_H}, s{S_WID}, 2")
    b(f"s_and_b32 s{S_T0}, s{S_WID}, 3")
    b(f"s_lshl_b32 s{S_SB}, s{S_ST}, 2")
    b(f"s_add_u32 s{S_SB}, s{S_SB}, s{S_T0}")
    b(f"s_mul_i32 s{S_T1}, s{S_SB}, 20480")
    b(f"v_lshlrev_b32 v{T}, 6, v2")
    b(f"v_lshl_add_u32 v{T}, v3, 4, v{T}")
    b(f"s_mul_i32 s{S_OK}, s{S_H}, 10240")
    b(f"s_add_u32 s{S_OK}, s{S_OK}, s{S_T1}")
    b(f"s_add_u32 s{S_OK}, s{S_OK}, {WS_O}")
    b(f"v_add_u32 v{T+6}, 4096, v{T}")
    b(f"v_add_u32 v{T+7}, 8192, v{T}")
    b(f"s_and_b32 s{S_HF}, s{S_NT}, 1")
    b(f"s_mul_i32 s{S_YU}, s{S_NT}, 2560")
    b(f"s_add_u32 s{S_YU}, s{S_YU}, s{S_T1}")
    b(f"s_add_u32 s{S_YU}, s{S_YU}, {WS_Y}")
    b(f"s_add_u32 s{S_YW}, s{S_YU}, 2621440")
    b(f"s_lshl_b32 s{S_T2}, s{S_H}, 10")
    b(f"s_lshl_b32 s{S_T3}, s{S_HF}, 9")
    b(f"s_add_u32 s{S_T2}, s{S_T2}, s{S_T3}")
    b(f"v_lshlrev_b32 v{V_YA}, 4, v0")
    b(f"v_add_u32 v{V_YA}, s{S_T2}, v{V_YA}")
    b(f"s_xor_b32 s{S_T3}, s{S_HF}, 1")
    b(f"s_lshl_b32 s{S_T2}, s{S_T3}, 11")
    b(f"v_lshlrev_b32 v{T+1}, 3, v0")
    b(f"v_add_u32 v{T+1}, s{S_T2}, v{T+1}")
    b(f"s_lshl_b32 s5, s{S_SB}, 6")
    b(f"s_add_u32 s5, s5, {WS_G}")
    b(f"v_lshlrev_b32 v{T+2}, 2, v2")
    b(f"s_mov_b32 s{S_GA}, s5")
    b(f"v_lshrrev_b32 v{T+3}, 5, v0")
    b(f"v_lshlrev_b32 v{T+3}, 4, v{T+3}")
    b(f"v_bfe_u32 v{T+4}, v0, 2, 3")
    b(f"v_add_u32 v{T+3}, v{T+3}, v{T+4}")
    b(f"v_mul_u32_u24 v{T+3}, 160, v{T+3}")
    b(f"v_and_b32 v{T+4}, 3, v0")
    b(f"v_lshl_add_u32 v{V_AD}, v{T+4}, 3, v{T+3}")
    b(f"s_mul_i32 s{S_T2}, s{S_H}, 51200")
    b(f"v_add_u32 v{V_AD}, s{S_T2}, v{V_AD}")
    b(f"s_lshl_b32 s{S_T3}, s{S_T3}, 7")
    b(f"s_lshl_b32 s{S_HF}, s{S_HF}, 5")
    b(f"v_add_u32 v{V_AD2}, s{S_T3}, v{V_AD}")
    b(f"v_add_u32 v{V_AD}, s{S_HF}, v{V_AD}")
    b(f"s_xor_b32 s{S_T2}, s{S_WID}, 4")
    b(f"s_mul_i32 s{S_T2}, s{S_T2}, 3072")
    b(f"s_add_u32 s{S_T2}, s{S_T2}, {XCH}")
    b(f"v_lshlrev_b32 v{T+3}, 4, v0")
    b(f"v_add_u32 v{V_X}, s{S_T2}, v{T+3}")
    b(f"s_mul_i32 s{S_T2}, s{S_WID}, 3072")
    b(f"s_add_u32 s{S_T2}, s{S_T2}, {XCH}")
    b(f"v_add_u32 v{V_X+1}, s{S_T2}, v{T+3}")
    b(f"s_mul_i32 s{S_T2}, s{S_NT}, 160")
    b(f"s_add_u32 s{S_T2}, s{S_T2}, s{S_T1}")
    b(f"v_mul_u32_u24 v{T+5}, 1280, v2")
    b(f"v_lshl_add_u32 v{T+5}, v3, 3, v{T+5}")
    b(f"v_add_u32 v{T+5}, s{S_T2}, v{T+5}")
    b(f"v_add_u32 v{V_OA2}, s{S_T3}, v{T+5}")
    b(f"v_add_u32 v{T+5}, s{S_HF}, v{T+5}")
    for i in range(20):
        b(f"v_mov_b32 v{V_ACC+i}, 0")
    b("s_waitcnt lgkmcnt(0)")
    srd(b, S_OUT, 10, 11, 2048 * 1280)

    def read1(k, n):
        buf = V_A + 20 * (k & 1)
        for a in range(2):
            b(f"ds_read_b64_tr_b16 {vr(buf+4*n+2*a, 2)}, v{V_AD2 if n == 2 else V_AD} offset:{k*5120 + a*1280 + COL[n]}")

    def mfma1(k, n):
        buf = V_A + 20 * (k & 1)
        acc = vr(V_ACC + 4 * n, 4)
        b(f"{MF} {acc}, {vr(buf+4*n, 4)}, {vr(V_O+4*k, 4)}, {acc}")

    b("s_waitcnt vmcnt(15)")
    b(f"s_cmp_lt_u32 s{S_WID}, 2")
    b("s_cbranch_scc1 f_s2_w")
    b("s_waitcnt vmcnt(14)")
    b(f"s_cmp_lg_u32 s{S_WID}, {SYNC_WAVE}")
    b("s_cbranch_scc1 f_s2_w")
    b("s_waitcnt vmcnt(0)")
    b.label("f_s2_w")
    stamp(b, 5)
    stamp(b, 6, True)
    stamp_store(b, 1, S_WS, S_WID, V_SY)
    b("s_barrier")
    sync2(b, S_ST, V_SY)
    b("s_barrier")
    stamp(b, 0)
    stamp(b, 1, True)
    for k in range(10):
        va = (T, T + 6, T + 7)[k >> 2]
        b(f"buffer_load_dwordx4 {vr(V_O+4*k, 4)}, v{va}, {ws}, s{S_OK} offen offset:{(k & 3)*1024}{SC}")
    for mm, so in enumerate((S_YU, S_YW)):
        b(f"buffer_load_dwordx4 {vr(V_Y+8*mm, 4)}, v{V_YA}, {ws}, s{so} offen{SC}")
        b(f"buffer_load_dwordx2 {vr(V_Y+8*mm+4, 2)}, v{T+1}, {ws}, s{so} offen{SC}")
    b(f"buffer_load_dword v{V_G}, v{T+2}, {ws}, s{S_GA} offen{SC}")
    stamp(b, 2)
    b("s_waitcnt vmcnt(15)")
    b("s_barrier")
    for n in range(5):
        read1(0, n)
    for k in range(10):
        b(f"s_waitcnt vmcnt({14 - k})")
        if k == 0:
            stamp(b, 3)
        for n in range(5):
            if k < 9:
                b("s_waitcnt lgkmcnt(8)")
                mfma1(k, n)
                read1(k + 1, n)
            else:
                b(f"s_waitcnt lgkmcnt({8 - 2*n})")
                mfma1(k, n)
    stamp(b, 4)
    b("s_waitcnt vmcnt(0)")
    b(f"v_sub_f32 v{V_G+1}, 1.0, v{V_G}")
    b(f"v_cvt_pk_bf16_f32 v{V_G+1}, v{V_G+1}, v{V_G+1}")
    b(f"v_lshlrev_b32 v{V_G+1}, 16, v{V_G+1}")
    for i in range(6):
        u, w = V_Y + i, V_Y + 8 + i
        b(f"v_lshlrev_b32 v{V_T2+2*i}, 16, v{u}")
        b(f"v_lshlrev_b32 v{T}, 16, v{w}")
        b(f"v_and_b32 v{V_T2+2*i+1}, 0xffff0000, v{u}")
        b(f"v_and_b32 v{T+1}, 0xffff0000, v{w}")
        b(f"v_add_f32 v{V_T2+2*i}, v{V_T2+2*i}, v{T}")
        b(f"v_add_f32 v{V_T2+2*i+1}, v{V_T2+2*i+1}, v{T+1}")
        b(f"v_mul_f32 v{V_T2+2*i}, v{V_T2+2*i}, v{V_G+1}")
        b(f"v_mul_f32 v{V_T2+2*i+1}, v{V_T2+2*i+1}, v{V_G+1}")
    h0, h1 = Block(), Block()
    for h, x in ((0, h0), (1, h1)):
        send = (3, 4) if h == 0 else (0, 1, 2)
        own = (0, 1, 2) if h == 0 else (3, 4)
        for i, n in enumerate(send):
            x(f"ds_write_b128 v{V_X}, {vr(V_ACC+4*n, 4)} offset:{i*1024}")
        x("s_waitcnt lgkmcnt(0)")
        x("s_barrier")
        for i, n in enumerate(own):
            x(f"ds_read_b128 {vr(V_R+4*i, 4)}, v{V_X+1} offset:{i*1024}")
        for i, n in enumerate(own):
            x(f"s_waitcnt lgkmcnt({len(own)-1-i})")
            a = V_ACC + 4 * n
            for r in range(4):
                x(f"v_add_f32 v{a+r}, v{a+r}, v{V_R+4*i+r}")
            for r in range(4):
                x(f"v_fma_f32 v{a+r}, v{a+r}, v{V_G}, v{V_T2+4*i+r}")
            x(f"v_cvt_pk_bf16_f32 v{a}, v{a}, v{a+1}")
            x(f"v_cvt_pk_bf16_f32 v{a+1}, v{a+2}, v{a+3}")
            x(f"buffer_store_dwordx2 {vr(a, 2)}, v{V_OA2 if n == 2 else T+5}, s[{S_OUT}:{S_OUT+3}], 0 offen offset:{COL[n]}")
        if PROF['on']:
            x("s_waitcnt vmcnt(0)")
        stamp(x, 5)
        stamp(x, 6, True)
        stamp_store(x, 2, S_WS, S_WID, V_A)
        x("s_endpgm")
    traces = [('0', b.l + h0.l), ('1', b.l + h1.l)]
    out = Block()
    out.extend(b)
    out(f"s_cmp_lg_u32 s{S_H}, 0")
    out("s_cbranch_scc1 p3_h1")
    out.extend(h0)
    out.label("p3_h1")
    out.extend(h1)
    return out, traces
```

```python
from asmfw import *
from layout import *
import os
FX = os.environ.get("FX", "").split('_')

S_GW = 60
S_GMAT, S_GTT, S_GET = 61, 62, 63
S_DBG = 64
S_GWS = 68
S_GC = 72
SYNC_WAVE = 7
WS_CNT = 0x7B4000
CNT_A = 16
CNT_G = 48
SPIN_MAX = 1 << 20
SC = " sc1"


def srd(b, s, lo, hi, size):
    b(f"s_mov_b32 s{s}, s{lo}")
    b(f"s_and_b32 s{s+1}, s{hi}, 0xffff")
    b(f"s_mov_b32 s{s+2}, {size}")
    b(f"s_mov_b32 s{s+3}, 0x00020000")


WS = f"s[{S_GWS}:{S_GWS+3}]"
DBG = f"s[{S_DBG}:{S_DBG+3}]"


def init_zero(b, vt):
    b(f"s_lshl_b32 s3, s2, 3")
    b(f"s_add_u32 s3, s3, s{S_GW}")
    b(f"s_cmp_lg_u32 s3, {SYNC_WAVE}")
    b("s_cbranch_scc1 f_noinit")
    b(f"v_lshlrev_b32 v{vt}, 8, v0")
    b(f"v_add_u32 v{vt}, {WS_CNT}, v{vt}")
    b(f"v_mov_b32 v{vt+1}, 0")
    b(f"s_movk_i32 s3, 0x4000")
    b(f"buffer_store_dword v{vt+1}, v{vt}, {WS}, 0 offen sc1")
    b(f"buffer_store_dword v{vt+1}, v{vt}, {WS}, s3 offen sc1")
    b.label("f_noinit")


_n = [0]


def init_flag(b, vt):
    _n[0] += 1
    lab = f"f_noflag{_n[0]}"
    b(f"s_lshl_b32 s3, s2, 3")
    b(f"s_add_u32 s3, s3, s{S_GW}")
    b(f"s_cmp_lg_u32 s3, {SYNC_WAVE}")
    b(f"s_cbranch_scc1 {lab}")
    b(f"v_mov_b32 v{vt}, 0")
    b(f"v_mov_b32 v{vt+1}, 1")
    b("s_mov_b64 exec, 1")
    b(f"buffer_store_dword v{vt+1}, v{vt}, {DBG}, 0 offen sc1")
    b("s_mov_b64 exec, -1")
    b.label(lab)


def ready_load(b, vz, vr_):
    b(f"v_mov_b32 v{vz}, 0")
    b(f"buffer_load_dword v{vr_}, v{vz}, {DBG}, 0 offen sc1")


def sync1(b, vr_, vt):
    b(f"s_cmp_lg_u32 s{S_GW}, {SYNC_WAVE}")
    b("s_cbranch_scc1 f_s1_skip")
    b(f"s_and_b32 s3, s2, 15")
    b(f"s_lshl_b32 s3, s3, 8")
    b(f"s_add_u32 s3, s3, {WS_CNT}")
    b(f"v_mov_b32 v{vt}, s3")
    b(f"v_and_b32 v{vt+1}, 15, v0")
    b(f"v_lshlrev_b32 v{vt+1}, 8, v{vt+1}")
    b(f"v_add_u32 v{vt+1}, {WS_CNT}, v{vt+1}")
    b(f"v_mov_b32 v{vt+2}, 1")
    b(f"v_mov_b32 v{vt+3}, 0")
    b("s_mov_b32 s4, 0")
    b.label("f_s1_rdy")
    b(f"v_cmp_ne_u32 vcc, 0, v{vr_}")
    b("s_add_u32 s4, s4, 1")
    b(f"s_cmp_gt_u32 s4, {SPIN_MAX}")
    b("s_cbranch_vccnz f_s1_go")
    b("s_cbranch_scc1 f_s1_go")
    b(f"buffer_load_dword v{vr_}, v{vt+3}, {DBG}, 0 offen sc1")
    b("s_waitcnt vmcnt(0)")
    b("s_branch f_s1_rdy")
    b.label("f_s1_go")
    b("s_mov_b64 exec, 1")
    b(f"buffer_atomic_add v{vt+2}, v{vt}, {WS}, 0 offen sc1")
    b("s_mov_b64 exec, -1")
    b.label("f_s1_poll")
    b(f"buffer_load_dword v{vt+3}, v{vt+1}, {WS}, 0 offen sc1")
    b("s_add_u32 s4, s4, 1")
    b(f"s_cmp_gt_u32 s4, {SPIN_MAX}")
    b("s_waitcnt vmcnt(0)")
    b(f"v_cmp_gt_u32 vcc, 16, v{vt+3}")
    b("s_cbranch_scc1 f_s1_skip")
    b("s_cbranch_vccnz f_s1_poll")
    b.label("f_s1_skip")


def sync2(b, s_st, vt):
    b(f"s_cmp_lg_u32 s{S_GW}, {SYNC_WAVE}")
    b("s_cbranch_scc1 f_s2_skip")
    b(f"s_add_u32 s3, s{s_st}, {CNT_A}")
    b(f"s_lshl_b32 s4, s{S_GMAT}, 5")
    b(f"s_add_u32 s4, s4, s{S_GTT}")
    b(f"s_add_u32 s4, s4, {CNT_G}")
    b(f"v_mov_b32 v{vt}, s4")
    b(f"v_mov_b32 v{vt+1}, s3")
    b("v_cmp_eq_u32 vcc, 0, v0")
    b(f"v_mov_b32 v{vt+2}, 1")
    b(f"v_lshlrev_b32 v{vt+3}, 5, v0")
    b(f"v_cndmask_b32 v{vt}, v{vt}, v{vt+1}, vcc")
    b(f"v_lshlrev_b32 v{vt}, 8, v{vt}")
    b(f"v_add_u32 v{vt}, {WS_CNT}, v{vt}")
    b(f"v_add_u32 v{vt+1}, v{vt+1}, v{vt+3}")
    b(f"v_lshlrev_b32 v{vt+1}, 8, v{vt+1}")
    b(f"v_add_u32 v{vt+1}, {WS_CNT}, v{vt+1}")
    b(f"v_cndmask_b32 v{vt+4}, 4, 8, vcc")
    b("s_mov_b32 s4, 0")
    b("s_mov_b64 exec, 3")
    b(f"buffer_atomic_add v{vt+2}, v{vt}, {WS}, 0 offen sc1")
    b("s_mov_b64 exec, 7")
    b.label("f_s2_poll")
    b(f"buffer_load_dword v{vt+3}, v{vt+1}, {WS}, 0 offen sc1")
    b("s_add_u32 s4, s4, 1")
    b(f"s_cmp_gt_u32 s4, {SPIN_MAX}")
    b("s_waitcnt vmcnt(0)")
    b(f"v_cmp_gt_u32 vcc, v{vt+4}, v{vt+3}")
    b("s_cbranch_scc1 f_s2_done")
    b("s_cbranch_vccnz f_s2_poll")
    b.label("f_s2_done")
    b("s_mov_b64 exec, -1")
    b.label("f_s2_skip")
```

```python
import sys
sys.path.insert(0, 'gen')
import asmfw
if '--prof' in sys.argv:
    sys.argv.remove('--prof')
    asmfw.PROF['on'] = True
final = '--final' in sys.argv
import f1, f2, f3
from asmfw import *
HEADER = open('gated_mix__grouped_kv_mqa__spectral_fnet__prompt.s.ref').read().split('; Override launch')[0]
LDS = 147456 + 8 * 1536
b1, t1 = f1.build()
b2, t2 = f2.build()
b3, t3 = f3.build()
probs = []
for n1, l1 in t1:
    probs += check_trace('f.' + n1, l1 + t2[0][1] + t3[0][1])
probs += check_trace('f.FB', t1[0][1] + t2[1][1] + t3[1][1])
if probs:
    print("\n".join(probs[:60])); print(len(probs), "PROBLEMS")
out = Block()
out.extend(b1).extend(b2).extend(b3)
out.label("f_end")
out("s_endpgm")
name = 'gated_mix__grouped_kv_mqa__spectral_fnet__prompt_kernel' if final else 'f_kernel'
launch = f"; @launch grid=(256,1,1) block=(512,1,1) lds={LDS}" if final else f"; @launch kernel=f_kernel grid=(256,1,1) block=(512,1,1) lds={LDS}"
s = HEADER + launch + '\n.amdgcn_target "amdgcn-amd-amdhsa--gfx950"\n' + kernel_text(name, out.text(), 256)
open(sys.argv[1], 'w').write(s)
sys.exit(1 if probs else 0)
```
